```python
import torch

def _softmax(x, axis=-1):
    return torch.softmax(x, dim=axis)
def _gelu(x):
    return torch.nn.functional.gelu(x, approximate="tanh")
def _silu(x):
    return torch.nn.functional.silu(x)
def _sigmoid(x):
    return torch.sigmoid(x)
def _layernorm(x, axis=-1, eps=1e-5):
    m = x.mean(dim=axis, keepdim=True)
    v = x.var(dim=axis, keepdim=True, unbiased=False)
    return (x - m) / torch.sqrt(v + eps)
def _scatter_add(tgt, idx, src, axis=0):
    return tgt.clone().index_add_(axis, idx, src)
def _segment_sum(src, seg, n):
    out = torch.zeros((n,) + src.shape[1:], dtype=src.dtype)
    return out.index_add_(0, seg, src)
def _pad(x, pw):
    flat = tuple(v for pair in reversed(pw) for v in pair)
    return torch.nn.functional.pad(x, flat)

kernel_name = 'standalone__mha_block_cached__near_ridge'

def setup_inputs():

    _w = (lambda a: (lambda t: t.to(torch.bfloat16) if t.is_floating_point() else t)(torch.as_tensor(a)))
    B, Sq, D = 16, 256, 512
    H, Sk, Dh = 32, 1024, 128
    return {
        "x": _w((lambda *s: torch.randn(*s, dtype=torch.bfloat16) * 0.8)(B, Sq, D)),
        "k_cache": _w((lambda *s: torch.randn(*s, dtype=torch.bfloat16) * 0.8)(B, H, Sk, Dh)),
        "v_cache": _w((lambda *s: torch.randn(*s, dtype=torch.bfloat16) * 0.05)(B, H, Sk, Dh)),
        "wq": _w((lambda *s: torch.randn(*s, dtype=torch.bfloat16) * 0.8)(D, H * Dh) * (D ** -0.5)),
        "wo": _w((lambda *s: torch.randn(*s, dtype=torch.bfloat16) * 0.05)(H * Dh, D) * ((H * Dh) ** -0.5)),
    }

def reference(x, k_cache, v_cache, wq, wo):
    B, Sq, D = x.shape
    H, Dh = 32, 128
    q = (lambda x, *d: x.permute(*d))((x @ wq).reshape(B, Sq, H, Dh), 0, 2, 1, 3)
    scores = torch.einsum("bhqd,bhkd->bhqk", q, k_cache) * (Dh ** -0.5)
    p = _softmax(scores, axis=-1)
    o = torch.einsum("bhqk,bhkd->bhqd", p, v_cache)
    return (lambda x, *d: x.permute(*d))(o, 0, 2, 1, 3).reshape(B, Sq, H * Dh) @ wo
```

```python
import re

def vr(base, n=1, f="v"):
    return "%s%d" % (f, base) if n == 1 else "%s[%d:%d]" % (f, base, base + n - 1)
def ar(base, n=1): return vr(base, n, "a")
def sr(base, n=1): return vr(base, n, "s")

_reg_re = re.compile(r"\b([vas])(?:(\d+)|\[(\d+):(\d+)\])")
def regs_of(tok):
    out = []
    for m in _reg_re.finditer(tok):
        f = m.group(1)
        if m.group(2) is not None: out.append((f, int(m.group(2))))
        else: out.extend((f, i) for i in range(int(m.group(3)), int(m.group(4)) + 1))
    return out

TRANS = ("v_exp_f32", "v_rcp_f32", "v_log_f32", "v_rsq_f32", "v_sqrt_f32")

class Ins:
    __slots__ = ("text", "op", "kind", "w", "r", "c", "d", "nop", "lg", "vm")
    def __init__(self, text):
        self.text = text
        t = text.split(";")[0].strip()
        self.op = t.split()[0] if t else ""
        rest = t[len(self.op):].strip()
        ops = [o.strip() for o in re.split(r",\s*(?![^\[]*\])", rest)] if rest else []
        self.w = []; self.r = []; self.c = []; self.d = []; self.nop = 1; self.lg = None; self.vm = None
        op = self.op
        if op.endswith(":") or op.startswith(".") or op == "":
            self.kind = "label"; self.nop = 0
        elif op.startswith("v_mfma"):
            self.kind = "mfma"
            self.w = regs_of(ops[0]); self.d = self.w
            self.r = regs_of(ops[1]) + regs_of(ops[2]); self.c = regs_of(ops[3])
        elif op.startswith("ds_read") or op.startswith("ds_bpermute") or op.startswith("ds_swizzle"):
            self.kind = "dsr"; self.w = regs_of(ops[0]); self.r = sum((regs_of(o.split(" offset")[0]) for o in ops[1:]), [])
        elif op.startswith("ds_write") or op.startswith("ds_add") or op.startswith("ds_max") or op.startswith("ds_or"):
            self.kind = "dsw"; self.r = sum((regs_of(o.split(" offset")[0]) for o in ops), [])
        elif op.startswith("buffer_load") or op.startswith("global_load"):
            if " lds" in t:
                self.kind = "dma"; self.r = sum((regs_of(o) for o in ops), [])
            else:
                self.kind = "vld"; self.w = regs_of(ops[0]); self.r = sum((regs_of(o) for o in ops[1:]), [])
        elif op.startswith("buffer_store") or op.startswith("global_store") or op.startswith("buffer_atomic") or op.startswith("global_atomic"):
            self.kind = "vst"; self.r = sum((regs_of(o) for o in ops), [])
        elif op == "s_nop":
            self.kind = "salu"; self.nop = int(ops[0], 0) + 1
        elif op == "s_waitcnt":
            self.kind = "wait"
            m = re.search(r"lgkmcnt\((\d+)\)", t); self.lg = int(m.group(1)) if m else None
            m = re.search(r"vmcnt\((\d+)\)", t); self.vm = int(m.group(1)) if m else None
        elif op.startswith("s_"):
            self.kind = "salu"
            if ops and not op.startswith(("s_cmp", "s_cbranch", "s_branch", "s_barrier", "s_endpgm", "s_setprio", "s_sleep")):
                self.w = regs_of(ops[0]) + ([("m", 0)] if ops[0] == "m0" else [])
                self.r = sum((regs_of(o) for o in ops[1:]), [])
            else:
                self.r = sum((regs_of(o) for o in ops), [])
        elif op.startswith("v_"):
            self.kind = "trans" if op.replace("_e32", "").replace("_e64", "") in TRANS else "valu"
            if op.startswith("v_cmp"):
                self.w = regs_of(ops[0]) + ([("vcc", 0)] if ops[0] == "vcc" else [])
                self.r = sum((regs_of(o) for o in ops[1:]), [])
            elif op.startswith(("v_permlane16_swap", "v_permlane32_swap")):
                self.w = regs_of(ops[0]) + regs_of(ops[1]); self.r = list(self.w)
            else:
                self.w = regs_of(ops[0]); self.r = sum((regs_of(o.split(" op_sel")[0]) for o in ops[1:]), [])
                if op.startswith(("v_fmac", "v_dot2c", "v_writelane")): self.r += self.w
        else:
            raise ValueError("unknown instruction: " + text)

def check(lines, name="", initial_pending=True):
    ins = [Ins(l) for l in lines]
    errs = []
    pos = []; p = 0
    for i in ins:
        pos.append(p); p += i.nop
    lastw = {}
    lastc = {}
    laststore = {}
    pend = []
    pendreg = {}
    def dist(a, b):
        return pos[b] - pos[a] - ins[a].nop
    for n, i in enumerate(ins):
        if i.kind == "label": continue
        rd = list(i.r) + list(i.c)
        for r in rd + list(i.w):
            if r in pendreg and i.kind != "wait":
                if not (i.kind == "dsr" and r in i.w and r not in rd and False):
                    errs.append("%s: LDS result %s%d used/overwritten before wait at #%d '%s' (read at #%d '%s')" % (name, r[0], r[1], n, i.text.strip(), pendreg[r], ins[pendreg[r]].text.strip()))
                    del pendreg[r]
        for r in rd:
            if r in lastw:
                a, k = lastw[r]
                need = 0
                if k == "mfma":
                    if i.kind == "mfma":
                        if r in i.c and r not in i.r:
                            need = 0 if (ins[a].d == i.c) else 6
                        else: need = 8
                    else: need = 8
                elif k in ("valu", "trans"):
                    if i.kind == "mfma": need = 2
                    elif k == "trans" and i.kind in ("valu",): need = 1
                    if i.op.startswith("v_permlane"): need = max(need, 2)
                    if i.op.startswith(("v_readfirstlane", "v_readlane")): need = max(need, 1)
                    if r[0] == "s" and i.kind in ("dma", "vld", "vst"): need = 5
                    if r[0] in ("s", "vcc") and i.kind in ("valu", "trans"): need = 2
                elif k == "salu":
                    pass
                if dist(a, n) < need:
                    errs.append("%s: RAW hazard %s%d: #%d '%s' -> #%d '%s' dist %d < %d" % (name, r[0], r[1], a, ins[a].text.strip(), n, i.text.strip(), dist(a, n), need))
        if i.kind == "dma" and ("m", 0) in lastw:
            a, k = lastw[("m", 0)]
            if dist(a, n) < 1: errs.append("%s: m0 hazard at #%d" % (name, n))
        for r in i.w:
            if r in lastw:
                a, k = lastw[r]
                if k == "mfma" and not (i.kind == "mfma" and ins[a].d == i.d):
                    need = 8 if i.kind != "mfma" else 6
                    if i.kind == "mfma" and False: need = 0
                    if dist(a, n) < need:
                        errs.append("%s: WAW hazard %s%d: #%d '%s' -> #%d '%s' dist %d < %d" % (name, r[0], r[1], a, ins[a].text.strip(), n, i.text.strip(), dist(a, n), need))
            if r in lastc and i.kind in ("valu", "trans"):
                a = lastc[r]
                if dist(a, n) < 3: errs.append("%s: WAR srcC hazard %s%d #%d -> #%d" % (name, r[0], r[1], a, n))
            if r in laststore and i.kind in ("valu", "trans"):
                a = laststore[r]
                if dist(a, n) < 2: errs.append("%s: store-data WAR %s%d #%d -> #%d" % (name, r[0], r[1], a, n))
        for r in i.w: lastw[r] = (n, i.kind)
        if i.kind == "mfma":
            for r in i.c: lastc[r] = n
        if i.kind == "vst":
            for r in i.r: laststore[r] = n
        if i.kind in ("dsr", "dsw"):
            pend.append(n)
            if i.kind == "dsr":
                for r in i.w: pendreg[r] = n
        if i.kind == "wait" and i.lg is not None:
            keep = pend[len(pend) - i.lg:] if i.lg > 0 else []
            done = set(pend) - set(keep)
            pend = list(keep)
            for r in [r for r, a in pendreg.items() if a in done]: del pendreg[r]
    return errs


def autofix(ctx, lines, name=""):
    lines = list(lines)
    for it in range(10000):
        errs = check(ctx + lines, name)
        fix = None
        for e in errs:
            m = re.search(r"-> #(\d+) .* dist (\d+) < (\d+)", e)
            if m and int(m.group(1)) >= len(ctx):
                fix = (int(m.group(1)) - len(ctx), int(m.group(3)) - int(m.group(2))); break
        if fix is None: return lines, errs
        lines.insert(fix[0], "  s_nop %d" % (fix[1] - 1))
    raise RuntimeError("autofix failed")
```

```python
import sys
from asmlib import *

STAMPS = "--stamps" in sys.argv
OUT = [a for a in sys.argv[1:] if not a.startswith("--")]
OUT = OUT[0] if OUT else "out.s"

KA = "standalone__mha_block_cached__near_ridge_kernel"
KB = "oproj_kernel"

aK = 2
aV = 6
vK = 14
vV = 18
aW = 20
aX = 24
vW = 25
vX = 29
TMP = 33
STP = 47
LS = 48
S_ = 64
P_ = 96
O_ = 128
AR = 64
XB = 96
QA = 0
Q2A = 64
KA_ = 128
VA_ = 160
ONES = 192
sK, sV, sX, sW, sO = 4, 8, 12, 16, 20
sWAVE, sW4K, sKOFF, sVOFF, sWOFF, sXOFF, sCNT, sOOFF = 24, 25, 26, 27, 28, 29, 30, 31
sT = 48
sST = 60
sSTB = 64

SCALE = 0.08838834764831845 * 1.4426950408889634

import struct
def f2u(f): return struct.unpack("<I", struct.pack("<f", f))[0]

class Prog:
    def __init__(self): self.L = []
    def e(self, s): self.L.append("  " + s)
    def lab(self, s): self.L.append(s + ":")
    def ext(self, l): self.L.extend(l)

def mfma(d, a, b, c):
    return "v_mfma_f32_16x16x32_bf16 %s, %s, %s, %s" % (d, a, b, c)

def stamp(p, i):
    if not STAMPS: return
    p.e("s_memrealtime s[%d:%d]" % (sST, sST + 1))
    p.e("s_memtime s[%d:%d]" % (sST + 2, sST + 3))
    p.e("s_waitcnt lgkmcnt(0)")
    p.e("v_writelane_b32 v%d, s%d, %d" % (STP, sST, i))
    p.e("v_writelane_b32 v%d, s%d, %d" % (STP, sST + 2, 8 + i))

def stamp_store(p, wsreg, nw=4):
    if not STAMPS: return
    p.e("s_add_u32 s%d, s%d, 0x10000000" % (sSTB, wsreg))
    p.e("s_addc_u32 s%d, s%d, 0" % (sSTB + 1, wsreg + 1))
    p.e("s_and_b32 s%d, s%d, 0xffff" % (sSTB + 1, sSTB + 1))
    p.e("s_mov_b32 s%d, 0x100000" % (sSTB + 2))
    p.e("s_mov_b32 s%d, 0x20000" % (sSTB + 3))
    p.e("s_lshl_b32 s%d, s2, 2" % sT)
    p.e("s_add_u32 s%d, s%d, s%d" % (sT, sT, sWAVE))
    p.e("s_lshl_b32 s%d, s%d, 6" % (sT, sT))
    p.e("v_and_b32 v0, 63, v0")
    p.e("v_lshlrev_b32 v1, 2, v0")
    p.e("v_cmp_gt_u32 vcc, 16, v0")
    p.e("s_nop 1")
    p.e("s_and_saveexec_b64 s[%d:%d], vcc" % (sT + 2, sT + 3))
    p.e("buffer_store_dword v%d, v1, s[%d:%d], s%d offen" % (STP, sSTB, sSTB + 3, sT))
    p.e("s_waitcnt vmcnt(0)")
    p.e("s_mov_b64 exec, s[%d:%d]" % (sT + 2, sT + 3))

def srd(p, base, lo, hi, size):
    p.e("s_mov_b32 s%d, s%d" % (base, lo))
    p.e("s_and_b32 s%d, s%d, 0xffff" % (base + 1, hi))
    p.e("s_mov_b32 s%d, 0x%x" % (base + 2, size))
    p.e("s_mov_b32 s%d, 0x20000" % (base + 3))

class Gaps:
    def __init__(self, mf):
        self.mf = mf
        n = len(mf)
        self.pre = [[] for _ in range(n)]
        self.mem = [[] for _ in range(n)]
        self.val = [[] for _ in range(n)]
        self.post = [[] for _ in range(n)]
    def cost(self, g):
        c = 0
        for x in self.mem[g]: c += 4
        for x in self.val[g]: c += 8 if x.startswith("v_exp") else 4
        return c
    def lines(self):
        L = []
        for g, m in enumerate(self.mf):
            if m is not None: L.append("  " + m)
            for x in self.pre[g] + self.mem[g] + self.val[g] + self.post[g]: L.append("  " + x)
        return L

def dma(voff, srdb, soff, j, nt):
    return "buffer_load_dwordx4 v%d, s[%d:%d], s%d offen offset:%d %slds" % (voff, srdb, srdb + 3, soff, j * 1024, "nt " if nt else "")

def kv_dma_group(which, slot):
    if which == "K":
        setup = ["s_add_u32 m0, s%d, 0x%x" % (sW4K, slot * 16384)]
        d = [dma(vK + j, sK, sKOFF, j, True) for j in range(4)]
        post = ["s_add_u32 s%d, s%d, 0x4000" % (sKOFF, sKOFF)]
    else:
        setup = ["s_add_u32 m0, s%d, 0x%x" % (sW4K, 65536 + slot * 16384)]
        d = [dma(vV + (j & 1), sV, sVOFF, j, True) for j in range(4)]
        post = ["s_add_u32 s%d, s%d, 0x4000" % (sVOFF, sVOFF)]
    return setup, d, post

def wx_dma_group(which, slot):
    if which == "W":
        setup = ["s_add_u32 m0, s%d, 0x%x" % (sW4K, slot * 16384)]
        d = [dma(vW + j, sW, sWOFF, j, False) for j in range(4)]
        post = ["s_add_u32 s%d, s%d, 0x40000" % (sWOFF, sWOFF)]
    else:
        setup = ["s_add_u32 m0, s%d, 0x%x" % (sW4K, 65536 + slot * 16384)]
        d = [dma(vX + j, sX, sXOFF, j, False) for j in range(4)]
        post = ["s_add_u32 s%d, s%d, 64" % (sXOFF, sXOFF)]
    return setup, d, post

def place_dma_groups(G, groups, gaps):
    k = 0
    for setup, d, post in groups:
        g0 = gaps[k]
        G.pre[g0 - 1].extend(setup)
        for j in range(4):
            G.mem[gaps[k + j]].append(d[j])
        gl = gaps[k + 3]
        G.pre[gl + 1].extend(post)
        k += 4

def qproj_period(s_slot, par, groups, first_prev=True):
    mf = []
    for blk in range(12, 16):
        for qb in range(4):
            mf.append(mfma(ar((blk * 4 + qb) * 4, 4), vr(AR + (blk % 8) * 4, 4), vr(XB + (par ^ 1) * 16 + qb * 4, 4), ar((blk * 4 + qb) * 4, 4)))
    for blk in range(0, 12):
        for qb in range(4):
            mf.append(mfma(ar((blk * 4 + qb) * 4, 4), vr(AR + (blk % 8) * 4, 4), vr(XB + par * 16 + qb * 4, 4), ar((blk * 4 + qb) * 4, 4)))
    G = Gaps(mf)
    so = s_slot * 16384
    for qb in range(4):
        G.mem[qb].append("ds_read_b128 %s, v%d offset:%d" % (vr(XB + par * 16 + qb * 4, 4), aX, so + qb * 1024))
    for blk in range(16):
        h, t, Y = blk // 8, (blk % 8) // 2, blk % 2
        if blk < 4: free = 0
        elif blk < 8: free = (blk - 4) * 4 + 4
        else: free = 16 + (blk - 8) * 4 + 4
        want = max(free, int(blk * 3.4) + 1)
        for jj in range(2):
            g = want + jj
            G.mem[g].append("ds_read_b64_tr_b16 %s, v%d offset:%d" % (vr(AR + (blk % 8) * 4 + 2 * jj, 2), aW + t, so + jj * 2048 + h * 256 + 8 * Y))
    if groups:
        cand = [g for g in range(2, 62) if len(G.mem[g]) == 0]
        n = 4 * len(groups)
        pick = [cand[int((k + 0.5) * len(cand) / n)] for k in range(n)]
        place_dma_groups(G, groups, pick)
    return G

def auto_lgkm(lines):
    ins = [Ins(l) for l in lines]
    out = []
    pend = []
    inserts = {}
    lastm = None
    for n, i in enumerate(ins):
        if i.kind == "mfma":
            need = None
            regs = set(i.r) | set(i.c)
            for k, (idx, w) in enumerate(pend):
                if regs & w: need = k
            if need is not None:
                at = lastm + 1 if lastm is not None else n
                idx_need = pend[need][0]
                assert idx_need < at, "LDS read too late for consumer: %s" % i.text
                cnt = sum(1 for (idx, w) in pend[need + 1:] if idx < at)
                cnt = min(cnt, 15)
                inserts.setdefault(at, []).append(cnt)
                pend = [(idx, w) for (idx, w) in pend[need + 1:]]
            lastm = n
        if i.kind in ("dsr", "dsw"):
            pend.append((n, set(i.w)))
        if i.kind == "wait" and i.lg is not None:
            pend = pend[len(pend) - i.lg:] if i.lg > 0 else []
    for n, l in enumerate(lines):
        if n in inserts: out.append("  s_waitcnt lgkmcnt(%d)" % min(inserts[n]))
        out.append(l)
    return out

def att_period(upar, kslot, khalf, vslot, vhalf, groups, do_qk=True, do_pv=True, do_vread=True, do_kread=True, czero=False):
    mf = []
    for qb in range(4):
        for kb in range(2):
            b = qb * 2 + kb
            for t in range(4):
                c = "0" if t == 0 else vr(S_ + b * 4, 4)
                mf.append(mfma(vr(S_ + b * 4, 4), ar(KA_ + (kb * 4 + t) * 4, 4), ar(QA + (t * 4 + qb) * 4, 4), c) if do_qk else None)
    for qb in range(4):
        pf = vr(P_ + upar * 16 + qb * 4, 4)
        for db in range(8):
            o = vr(O_ + (db * 4 + qb) * 4, 4)
            mf.append(mfma(o, ar(VA_ + db * 4, 4), pf, "0" if czero else o) if do_pv else None)
        l = vr(LS + qb * 4, 4)
        mf.append(mfma(l, ar(ONES, 4), pf, "0" if czero else l) if do_pv else None)
    G = Gaps(mf)
    n = len(mf)
    expg = []
    if do_qk:
        expg = [8 + int(round(e * 57 / 31.0)) for e in range(32)]
        for e, g in enumerate(expg):
            b, r = e // 4, e % 4
            G.val[g].append("v_exp_f32 v%d, v%d" % (S_ + b * 4 + r, S_ + b * 4 + r))
    es = set(expg)
    ne = [g for g in range(n) if g not in es]
    if do_vread:
        k = 0
        vg = [g for g in ne if g < 24]
        reads = []
        for db in range(8):
            for jj in range(2):
                reads.append("ds_read_b64_tr_b16 %s, v%d offset:%d" % (ar(VA_ + db * 4 + 2 * jj, 2), aV + db, vslot * 16384 + (vhalf * 32 + 16 * jj) * 256))
        order = []
        for i, g in enumerate(vg): order.append(g)
        slots = []
        for g in vg: slots.append(g)
        extra = 16 - len(slots)
        for g in vg[:max(0, extra)]: slots.append(g)
        slots = sorted(slots)[:16]
        for rd, g in zip(reads, slots): G.mem[g].append(rd)
    kg = [g for g in ne if g >= 33 and g <= 62]
    dmag = []
    if groups:
        nd = 4 * len(groups)
        idxs = [int((k + 0.5) * len(kg) / nd) for k in range(nd)]
        dmag = [kg[i] for i in idxs]
    rest = [g for g in kg if g not in dmag]
    if do_kread:
        reads = []
        for kb in range(2):
            for t in range(4):
                reads.append("ds_read_b128 %s, v%d offset:%d" % (ar(KA_ + (kb * 4 + t) * 4, 4), aK + t, kslot * 16384 + (khalf * 2 + kb) * 4096))
        assert len(rest) >= 8, rest
        sel = [rest[int(k * len(rest) / 8)] for k in range(8)]
        for rd, g in zip(reads, sel): G.mem[g].append(rd)
    if groups: place_dma_groups(G, groups, dmag)
    if do_qk:
        for b in range(8):
            qb, kb = b // 2, b % 2
            for hh in range(2):
                ge = expg[b * 4 + hh * 2 + 1]
                cand = [g for g in ne if g > ge and G.cost(g) <= 4]
                g = cand[0]
                G.val[g].append("v_cvt_pk_bf16_f32 v%d, v%d, v%d" % (P_ + (upar ^ 1) * 16 + qb * 4 + kb * 2 + hh, S_ + b * 4 + hh * 2, S_ + b * 4 + hh * 2 + 1))
    G.pre[31].append("s_waitcnt lgkmcnt(0)")
    return G

def kernelA():
    p = Prog()
    p.e("s_cmp_ge_u32 s2, 256")
    p.e("s_cbranch_scc1 LA_end")
    p.e("s_load_dwordx16 s[32:47], s[0:1], 0")
    p.e("v_lshrrev_b32 v33, 6, v0")
    p.e("v_and_b32 v34, 63, v0")
    p.e("v_readfirstlane_b32 s%d, v33" % sWAVE)
    p.e("v_and_b32 v35, 15, v34")
    p.e("v_lshrrev_b32 v36, 4, v34")
    p.e("v_lshrrev_b32 v37, 2, v35")
    p.e("v_and_b32 v38, 3, v34")
    p.e("v_lshlrev_b32 v1, 4, v34")
    if STAMPS: p.e("v_mov_b32 v%d, 0" % STP)
    p.e("s_and_b32 s%d, s2, 7" % sT)
    p.e("s_lshr_b32 s%d, s2, 3" % (sT + 1))
    p.e("s_lshl_b32 s%d, s%d, 1" % (sT, sT))
    p.e("s_lshr_b32 s%d, s%d, 4" % (sT + 2, sT + 1))
    p.e("s_add_u32 s%d, s%d, s%d" % (sT, sT, sT + 2))
    p.e("s_and_b32 s%d, s%d, 15" % (sT + 1, sT + 1))
    p.e("s_lshl_b32 s%d, s%d, 12" % (sW4K, sWAVE))
    for t in range(4):
        p.e("v_add_u32 v39, %d, v36" % (4 * t))
        p.e("v_xor_b32 v39, v39, v35")
        p.e("v_lshlrev_b32 v39, 4, v39")
        p.e("v_lshl_add_u32 v%d, v35, 8, v39" % (aK + t))
    p.e("v_and_b32 v40, 1, v36")
    p.e("v_lshl_add_u32 v40, v40, 2, v37")
    p.e("v_lshl_add_u32 v41, v36, 2, v37")
    p.e("v_lshlrev_b32 v41, 8, v41")
    p.e("v_lshl_add_u32 v41, v38, 3, v41")
    p.e("v_add_u32 v41, 0x10000, v41")
    for db in range(8):
        p.e("v_xor_b32 v39, %d, v40" % db)
        p.e("v_lshl_add_u32 v%d, v39, 5, v41" % (aV + db))
    for j in range(4):
        p.e("v_add_u32 v39, %d, v36" % (4 * j))
        p.e("v_xor_b32 v39, v39, v35")
        p.e("v_lshlrev_b32 v39, 4, v39")
        p.e("v_lshl_add_u32 v%d, v36, 8, v39" % (vK + j))
    for j in range(2):
        p.e("v_add_u32 v39, %d, v36" % (4 * j))
        p.e("v_lshlrev_b32 v39, 1, v39")
        p.e("v_xor_b32 v39, v39, v35")
        p.e("v_lshlrev_b32 v39, 4, v39")
        p.e("v_lshl_add_u32 v%d, v36, 8, v39" % (vV + j))
    p.e("v_lshl_add_u32 v41, v36, 3, v37")
    p.e("v_lshlrev_b32 v41, 9, v41")
    p.e("v_lshl_add_u32 v41, v38, 4, v41")
    for t in range(4):
        p.e("v_xor_b32 v39, %d, v37" % t)
        p.e("v_lshl_add_u32 v%d, v39, 6, v41" % (aW + t))
    p.e("v_lshrrev_b32 v39, 1, v35")
    p.e("v_and_b32 v39, 2, v39")
    p.e("v_xor_b32 v39, v39, v36")
    p.e("v_lshlrev_b32 v39, 4, v39")
    p.e("v_lshl_add_u32 v39, v35, 6, v39")
    p.e("v_add_u32 v39, 0x10000, v39")
    p.e("v_add_u32 v%d, s%d, v39" % (aX, sW4K))
    p.e("v_lshrrev_b32 v40, 5, v34")
    p.e("v_and_b32 v41, 31, v34")
    for j in range(4):
        p.e("v_add_u32 v39, %d, v40" % (2 * (j & 1)))
        p.e("v_lshlrev_b32 v39, 2, v39")
        p.e("v_xor_b32 v39, v39, v41")
        p.e("v_lshlrev_b32 v39, 4, v39")
        p.e("v_lshl_add_u32 v39, v40, 13, v39")
        p.e("v_add_u32 v%d, %d, v39" % (vW + j, j * 15360))
    p.e("v_lshrrev_b32 v39, 3, v34")
    p.e("v_and_b32 v39, 2, v39")
    p.e("v_xor_b32 v39, v39, v38")
    p.e("v_lshlrev_b32 v39, 4, v39")
    p.e("v_lshrrev_b32 v40, 2, v34")
    p.e("v_lshl_add_u32 v39, v40, 10, v39")
    for j in range(4):
        p.e("v_add_u32 v%d, %d, v39" % (vX + j, j * 15360))
    p.e("s_waitcnt lgkmcnt(0)")
    p.e("s_lshl_b32 s%d, s%d, 4" % (sT + 2, sT))
    p.e("s_add_u32 s%d, s%d, s%d" % (sT + 2, sT + 2, sT + 1))
    p.e("s_lshl_b32 s%d, s%d, 19" % (sT + 3, sT + 2))
    p.e("s_add_u32 s34, s34, s%d" % (sT + 3)); p.e("s_addc_u32 s35, s35, 0")
    p.e("s_add_u32 s36, s36, s%d" % (sT + 3)); p.e("s_addc_u32 s37, s37, 0")
    srd(p, sK, 34, 35, 0x80000)
    srd(p, sV, 36, 37, 0x80000)
    p.e("s_lshl_b32 s%d, s%d, 18" % (sT + 3, sT))
    p.e("s_add_u32 s32, s32, s%d" % (sT + 3)); p.e("s_addc_u32 s33, s33, 0")
    srd(p, sX, 32, 33, 0x40000)
    p.e("s_lshl_b32 s%d, s%d, 9" % (sT + 3, sT + 1))
    p.e("s_add_u32 s38, s38, s%d" % (sT + 3)); p.e("s_addc_u32 s39, s39, 0")
    srd(p, sW, 38, 39, 0x400000)
    p.e("s_sub_u32 s%d, s%d, s%d" % (sW + 2, sW + 2, sT + 3))
    p.e("s_lshl_b32 s%d, s%d, 21" % (sT + 3, sT))
    p.e("s_add_u32 s%d, s46, s%d" % (sT + 4, sT + 3)); p.e("s_addc_u32 s%d, s47, 0" % (sT + 5))
    srd(p, sO, sT + 4, sT + 5, 0x200000)
    p.e("s_mov_b32 s%d, s%d" % (sKOFF, sW4K))
    p.e("s_mov_b32 s%d, s%d" % (sVOFF, sW4K))
    p.e("s_lshl_b32 s%d, s%d, 16" % (sWOFF, sWAVE))
    p.e("s_lshl_b32 s%d, s%d, 16" % (sXOFF, sWAVE))
    p.e("s_lshl_b32 s%d, s%d, 17" % (sOOFF, sT + 1))
    p.e("s_add_u32 s%d, s%d, s%d" % (sOOFF, sOOFF, sW4K))
    stamp(p, 0)
    for s in range(3):
        for which in ("W", "X"):
            setup, d, post = wx_dma_group(which, s)
            for x in setup: p.e(x)
            p.e("s_nop 0")
            for x in d: p.e(x)
            for x in post: p.e(x)
    for r in range(256): p.e("v_accvgpr_write_b32 a%d, 0" % r)
    for r in range(AR, AR + 32): p.e("v_mov_b32 v%d, 0" % r)
    for r in range(XB, XB + 32): p.e("v_mov_b32 v%d, 0" % r)
    p.e("s_waitcnt vmcnt(16)")
    p.e("s_barrier")
    stamp(p, 1)
    def qp(s, groups, vm):
        G = qproj_period(s % 4, s % 2, groups)
        L = auto_lgkm(G.lines())
        L.append("  s_waitcnt vmcnt(%d) lgkmcnt(0)" % vm)
        L.append("  s_barrier")
        return L
    p.e("s_mov_b32 s%d, 3" % sCNT)
    body = []
    for s in range(4):
        sl = (s + 3) % 4
        body += qp(s, [wx_dma_group("W", sl), wx_dma_group("X", sl)], 16)
    errs = check(body + body, "qproj")
    p.lab("LA_qloop")
    p.ext(body)
    p.e("s_sub_u32 s%d, s%d, 1" % (sCNT, sCNT))
    p.e("s_cmp_lg_u32 s%d, 0" % sCNT)
    p.e("s_cbranch_scc1 LA_qloop")
    tail = []
    tail += qp(12, [wx_dma_group("W", 3), wx_dma_group("X", 3)], 16)
    tail += qp(13, [kv_dma_group("K", 0)], 12)
    tail += qp(14, [kv_dma_group("K", 1), kv_dma_group("V", 0)], 12)
    tail += qp(15, [kv_dma_group("K", 2), kv_dma_group("V", 1)], 16)
    for blk in range(12, 16):
        for qb in range(4):
            tail.append("  " + mfma(ar((blk * 4 + qb) * 4, 4), vr(AR + (blk % 8) * 4, 4), vr(XB + 1 * 16 + qb * 4, 4), ar((blk * 4 + qb) * 4, 4)))
    for which, sl in (("K", 3), ("V", 2)):
        setup, d, post = kv_dma_group(which, sl)
        tail += ["  " + x for x in setup] + ["  s_nop 0"] + ["  " + x for x in d] + ["  " + x for x in post]
    for kb in range(2):
        for t in range(4):
            pass
    conv = []
    conv.append("v_mov_b32 v34, 0x%x" % f2u(SCALE))
    conv.append("v_mov_b32 v35, 0x%x" % f2u(SCALE))
    conv.append("s_nop 4")
    for h in (0, 1):
        for t in range(4):
            for qb in range(4):
                X = ((h * 8 + 2 * t) * 4 + qb) * 4
                Y = ((h * 8 + 2 * t + 1) * 4 + qb) * 4
                T = 36
                for r in range(4): conv.append("v_accvgpr_read_b32 v%d, a%d" % (T + r, X + r))
                for r in range(4): conv.append("v_accvgpr_read_b32 v%d, a%d" % (T + 4 + r, Y + r))
                for r in range(0, 8, 2): conv.append("v_pk_mul_f32 v[%d:%d], v[%d:%d], v[34:35]" % (T + r, T + r + 1, T + r, T + r + 1))
                dst = O_ + h * 64 + (t * 4 + qb) * 4
                for r in range(4): conv.append("v_cvt_pk_bf16_f32 v%d, v%d, v%d" % (dst + r, T + 2 * r, T + 2 * r + 1))
    for r in range(128): conv.append("v_accvgpr_write_b32 a%d, v%d" % (r, O_ + r))
    for r in range(4): conv.append("v_accvgpr_write_b32 a%d, v33" % (ONES + r))
    tail.append("  v_mov_b32 v33, 0x3f803f80")
    tail += ["  " + x for x in conv]
    for r in range(128): tail.append("  v_mov_b32 v%d, 0" % (O_ + r))
    for r in range(16): tail.append("  v_mov_b32 v%d, 0" % (LS + r))
    for kb in range(2):
        for t in range(4):
            tail.append("  ds_read_b128 %s, v%d offset:%d" % (ar(KA_ + (kb * 4 + t) * 4, 4), aK + t, 0 * 16384 + kb * 4096))
    tail.append("  s_waitcnt lgkmcnt(0)")
    errs += check(body + tail, "qtail")
    p.ext(tail)
    stamp(p, 2)
    G = att_period(1, 0, 1, 0, 0, [], do_qk=True, do_pv=False, do_vread=False)
    pro = G.lines() + ["  s_waitcnt vmcnt(16) lgkmcnt(0)", "  s_barrier"]
    pro, e2 = autofix(tail[-40:], pro, "attpro")
    errs += e2
    p.ext(pro)
    stamp(p, 3)
    p.e("s_mov_b32 s%d, 0" % sCNT)
    body = []
    sw = []
    for r in range(64): sw.append("  v_accvgpr_mov_b32 a%d, a%d" % (QA + r, Q2A + r))
    ep = []
    ep.append("  s_nop 7")
    for qb in range(4):
        ep.append("  v_rcp_f32 v%d, v%d" % (34 + 2 * qb, LS + qb * 4))
    ep.append("  s_nop 0")
    for qb in range(4):
        ep.append("  v_mov_b32 v%d, v%d" % (35 + 2 * qb, 34 + 2 * qb))
    k = 0
    for t in range(4):
        for qb in range(4):
            X = O_ + ((2 * t) * 4 + qb) * 4; Y = O_ + ((2 * t + 1) * 4 + qb) * 4
            for base in (X, X + 2, Y, Y + 2):
                ep.append("  v_pk_mul_f32 v[%d:%d], v[%d:%d], v[%d:%d]" % (base, base + 1, base, base + 1, 34 + 2 * qb, 35 + 2 * qb))
            T = S_ + (k % 4) * 4 if False else 42 + 0
            T = [42, 0, 0, 0][0]
            T = 20 + (k % 3) * 4
            ep.append("  v_cvt_pk_bf16_f32 v%d, v%d, v%d" % (T, X, X + 1))
            ep.append("  v_cvt_pk_bf16_f32 v%d, v%d, v%d" % (T + 1, X + 2, X + 3))
            ep.append("  v_cvt_pk_bf16_f32 v%d, v%d, v%d" % (T + 2, Y, Y + 1))
            ep.append("  v_cvt_pk_bf16_f32 v%d, v%d, v%d" % (T + 3, Y + 2, Y + 3))
            ep.append("  buffer_store_dwordx4 v[%d:%d], v1, s[%d:%d], s%d offen offset:%d" % (T, T + 3, sO, sO + 3, sOOFF, qb * 1024))
            k += 1
        ep.append("  s_add_u32 s%d, s%d, 0x4000" % (sOOFF, sOOFF))
    for r in range(128): ep.append("  v_mov_b32 v%d, 0" % (O_ + r))
    for r in range(16): ep.append("  v_mov_b32 v%d, 0" % (LS + r))
    ep.append("  s_nop 1")
    parts = []
    for tp in range(4):
        G0 = att_period(0, (tp + 1) % 4, 0, tp % 4, 0, [kv_dma_group("K", tp % 4)])
        G1 = att_period(1, (tp + 1) % 4, 1, tp % 4, 1, [kv_dma_group("V", (tp + 3) % 4)])
        l0 = G0.lines() + ["  s_waitcnt lgkmcnt(0)"]
        l1 = G1.lines() + ["  s_waitcnt vmcnt(16) lgkmcnt(0)", "  s_barrier"]
        parts.append((l0, l1))
    flat = []
    for l0, l1 in parts: flat += l0 + l1
    errs += check(flat + flat, "att")
    errs += check(parts[3][0] + sw + parts[3][1] + ep + parts[0][0], "attsw")
    p.lab("LA_aloop")
    for tp in range(4):
        l0, l1 = parts[tp]
        p.ext(l0)
        if tp == 3:
            p.e("s_cmp_eq_u32 s%d, 3" % sCNT)
            p.e("s_cbranch_scc1 LA_qswitch")
            p.lab("LA_qswitch_ret")
        p.ext(l1)
    p.e("s_and_b32 s%d, s%d, 3" % (sT, sCNT))
    p.e("s_cmp_eq_u32 s%d, 3" % sT)
    p.e("s_cbranch_scc1 LA_epi")
    p.lab("LA_epi_ret")
    p.e("s_add_u32 s%d, s%d, 1" % (sCNT, sCNT))
    p.e("s_cmp_lt_u32 s%d, 8" % sCNT)
    p.e("s_cbranch_scc1 LA_aloop")
    stamp(p, 6)
    p.e("s_waitcnt vmcnt(0)")
    stamp(p, 7)
    stamp_store(p, 46)
    p.lab("LA_end")
    p.e("s_endpgm")
    p.lab("LA_qswitch")
    p.ext(sw)
    p.e("s_branch LA_qswitch_ret")
    p.lab("LA_epi")
    if STAMPS:
        p.e("s_cmp_eq_u32 s%d, 3" % sCNT); p.e("s_cbranch_scc0 LA_nost4"); stamp(p, 4); p.lab("LA_nost4")
    p.ext(ep)
    if STAMPS:
        p.e("s_cmp_eq_u32 s%d, 3" % sCNT); p.e("s_cbranch_scc0 LA_nost5"); stamp(p, 5); p.lab("LA_nost5")
    p.e("s_branch LA_epi_ret")
    for e in errs: print("HAZARD:", e, file=sys.stderr)
    return p.L

def kernelB():
    p = Prog()
    aWo = 2
    vWo = 10
    ACC = 128
    AF = 32
    BF = 0
    sWO, sOW, sOUT = 4, 8, 12
    sWOFF2, sOOFF2, sM0B = 26, 27, 28
    p.e("s_cmp_ge_u32 s2, 256")
    p.e("s_cbranch_scc1 LB_end")
    p.e("s_load_dwordx16 s[32:47], s[0:1], 0")
    p.e("v_lshrrev_b32 v20, 6, v0")
    p.e("v_and_b32 v21, 63, v0")
    p.e("v_readfirstlane_b32 s%d, v20" % sWAVE)
    p.e("v_and_b32 v22, 15, v21")
    p.e("v_lshrrev_b32 v23, 4, v21")
    p.e("v_lshrrev_b32 v24, 2, v22")
    p.e("v_and_b32 v25, 3, v21")
    p.e("v_lshlrev_b32 v1, 4, v21")
    if STAMPS: p.e("v_mov_b32 v%d, 0" % 30)
    p.e("s_and_b32 s%d, s2, 7" % sT)
    p.e("s_lshr_b32 s%d, s2, 3" % (sT + 1))
    p.e("s_lshl_b32 s%d, s%d, 1" % (sT, sT))
    p.e("s_lshr_b32 s%d, s%d, 4" % (sT + 2, sT + 1))
    p.e("s_add_u32 s%d, s%d, s%d" % (sT, sT, sT + 2))
    p.e("s_and_b32 s%d, s%d, 3" % (sT + 2, sT + 1))
    p.e("s_lshr_b32 s%d, s%d, 2" % (sT + 1, sT + 1))
    p.e("s_and_b32 s%d, s%d, 3" % (sT + 1, sT + 1))
    p.e("s_lshl_b32 s%d, s%d, 15" % (sM0B, sWAVE))
    p.e("v_and_b32 v26, 1, v23")
    p.e("v_lshl_add_u32 v26, v26, 2, v24")
    p.e("v_lshl_add_u32 v27, v23, 2, v24")
    p.e("v_lshlrev_b32 v27, 8, v27")
    p.e("v_lshl_add_u32 v27, v25, 3, v27")
    p.e("v_add_u32 v27, s%d, v27" % sM0B)
    for nb in range(8):
        p.e("v_xor_b32 v28, %d, v26" % nb)
        p.e("v_lshl_add_u32 v%d, v28, 5, v27" % (aWo + nb))
    for j in range(4):
        p.e("v_add_u32 v28, %d, v23" % (4 * (j & 1)))
        p.e("v_lshlrev_b32 v28, 1, v28")
        p.e("v_xor_b32 v28, v28, v22")
        p.e("v_lshlrev_b32 v28, 4, v28")
        p.e("v_lshl_add_u32 v28, v23, 10, v28")
        p.e("v_add_u32 v%d, %d, v28" % (vWo + j, j * 3072))
    p.e("v_lshlrev_b32 v14, 10, v22")
    p.e("v_lshl_add_u32 v14, v23, 3, v14")
    p.e("s_waitcnt lgkmcnt(0)")
    p.e("s_lshl_b32 s%d, s%d, 8" % (sT + 3, sT + 2))
    p.e("s_add_u32 s40, s40, s%d" % (sT + 3)); p.e("s_addc_u32 s41, s41, 0")
    srd(p, sWO, 40, 41, 0x400000)
    p.e("s_sub_u32 s%d, s%d, s%d" % (sWO + 2, sWO + 2, sT + 3))
    p.e("s_lshl_b32 s%d, s%d, 21" % (sT + 4, sT))
    p.e("s_add_u32 s46, s46, s%d" % (sT + 4)); p.e("s_addc_u32 s47, s47, 0")
    srd(p, sOW, 46, 47, 0x200000)
    if STAMPS:
        p.e("s_sub_u32 s46, s46, s%d" % (sT + 4)); p.e("s_subb_u32 s47, s47, 0")
    srd(p, sOUT, 42, 43, 0x400000)
    p.e("s_lshl_b32 s%d, s%d, 20" % (sWOFF2, sWAVE))
    p.e("s_lshl_b32 s%d, s%d, 19" % (sOOFF2, sWAVE))
    p.e("s_lshl_b32 s%d, s%d, 12" % (sT + 4, sT + 1))
    p.e("s_add_u32 s%d, s%d, s%d" % (sOOFF2, sOOFF2, sT + 4))
    p.e("s_lshl_b32 s29, s%d, 18" % sT)
    p.e("s_lshl_b32 s%d, s%d, 16" % (sT + 4, sT + 1)); p.e("s_add_u32 s29, s29, s%d" % (sT + 4))
    p.e("s_lshl_b32 s%d, s%d, 14" % (sT + 4, sWAVE)); p.e("s_add_u32 s29, s29, s%d" % (sT + 4))
    p.e("s_add_u32 s29, s29, s%d" % (sT + 3))
    global STP
    STP_save = STP; STP = 30
    stamp(p, 0)
    def issue(slot):
        ops = []
        for qb in range(4):
            ops.append(([], "buffer_load_dwordx4 %s, v1, s[%d:%d], s%d offen offset:%d" % (ar(BF + slot * 16 + qb * 4, 4), sOW, sOW + 3, sOOFF2, qb * 1024), ["s_add_u32 s%d, s%d, 0x4000" % (sOOFF2, sOOFF2)] if qb == 3 else []))
        for half in range(2):
            for j in range(4):
                pre = ["s_add_u32 m0, s%d, 0x%x" % (sM0B, slot * 8192 + half * 4096)] if j == 0 else []
                post = ["s_add_u32 s%d, s%d, 0x4000" % (sWOFF2, sWOFF2)] if j == 3 else []
                ops.append((pre, "buffer_load_dwordx4 v%d, s[%d:%d], s%d offen offset:%d lds" % (vWo + j, sWO, sWO + 3, sWOFF2, j * 1024), post))
        return ops
    for s in range(3):
        for pre, op, post in issue(s):
            for x in pre: p.e(x); p.e("s_nop 0")
            p.e(op)
            for x in post: p.e(x)
    for r in range(128): p.e("v_mov_b32 v%d, 0" % (ACC + r))
    def areads(slot, par):
        R = []
        for nb in range(8):
            for jj in range(2):
                R.append("ds_read_b64_tr_b16 %s, v%d offset:%d" % (vr(AF + par * 32 + nb * 4 + 2 * jj, 2), aWo + nb, slot * 8192 + jj * 4096))
        return R
    p.e("s_waitcnt vmcnt(24)")
    for x in areads(0, 0): p.e(x)
    p.e("s_waitcnt lgkmcnt(0)")
    stamp(p, 1)
    body = []
    for s in range(4):
        mf = []
        for nb in range(8):
            for qb in range(4):
                acc = vr(ACC + (nb * 4 + qb) * 4, 4)
                mf.append(mfma(acc, vr(AF + (s % 2) * 32 + nb * 4, 4), ar(BF + s * 16 + qb * 4, 4), acc))
        G = Gaps(mf)
        rd = areads((s + 1) % 4, (s + 1) % 2)
        for k, x in enumerate(rd): G.mem[2 + k + k // 2 if False else 1 + (k * 26) // 16].append(x)
        ops = issue((s + 3) % 4)
        free = [g for g in range(1, 31) if not G.mem[g]]
        sel = [free[int(k * len(free) / 12)] for k in range(12)]
        for (pre, op, post), g in zip(ops, sel):
            G.pre[g - 1].extend(pre); G.mem[g].append(op); G.pre[g + 1].extend(post)
        L = ["  s_waitcnt vmcnt(12)"] + G.lines() + ["  s_waitcnt lgkmcnt(0)"]
        body += L
    errs = check(body + body, "oproj")
    p.e("s_mov_b32 s%d, 8" % sCNT)
    p.lab("LB_loop")
    p.ext(body)
    p.e("s_sub_u32 s%d, s%d, 1" % (sCNT, sCNT))
    p.e("s_cmp_lg_u32 s%d, 0" % sCNT)
    p.e("s_cbranch_scc1 LB_loop")
    stamp(p, 2)
    p.e("s_waitcnt vmcnt(0)")
    p.e("s_barrier")
    p.e("s_lshl_b32 s%d, s%d, 15" % (sT, sWAVE))
    p.e("v_add_u32 v15, s%d, v1" % sT)
    p.e("s_lshl_b32 s%d, s%d, 13" % (sT, sWAVE))
    p.e("v_add_u32 v16, s%d, v1" % sT)
    p.e("v_add_u32 v17, 0x10000, v16")
    for qb in range(4):
        for nb in range(8):
            p.e("ds_write_b128 v15, %s offset:%d" % (vr(ACC + (nb * 4 + qb) * 4, 4), qb * 8192 + nb * 1024))
    p.e("s_waitcnt lgkmcnt(0)")
    p.e("s_barrier")
    for src in range(4):
        for nb in range(8):
            base = 16 if src < 2 else 17
            p.e("ds_read_b128 %s, v%d offset:%d" % (vr(128 + (src * 8 + nb) * 4, 4), base, (src % 2) * 32768 + nb * 1024))
        p.e("s_waitcnt lgkmcnt(0)")
    for nb in range(8):
        for r in range(4):
            a = 128 + nb * 4 + r
            p.e("v_add_f32 v%d, v%d, v%d" % (a, a, a + 32))
            p.e("v_add_f32 v%d, v%d, v%d" % (a + 64, a + 64, a + 96))
            p.e("v_add_f32 v%d, v%d, v%d" % (a, a, a + 64))
        p.e("v_cvt_pk_bf16_f32 v%d, v%d, v%d" % (32 + nb * 2, 128 + nb * 4, 128 + nb * 4 + 1))
        p.e("v_cvt_pk_bf16_f32 v%d, v%d, v%d" % (33 + nb * 2, 128 + nb * 4 + 2, 128 + nb * 4 + 3))
        p.e("buffer_store_dwordx2 v[%d:%d], v14, s[%d:%d], s29 offen offset:%d" % (32 + nb * 2, 33 + nb * 2, sOUT, sOUT + 3, nb * 32))
    p.e("s_waitcnt vmcnt(0)")
    stamp(p, 3)
    if STAMPS:
        p.e("s_add_u32 s46, s46, 0x10000"); p.e("s_addc_u32 s47, s47, 0")
    stamp_store(p, 46)
    STP = STP_save
    p.lab("LB_end")
    p.e("s_endpgm")
    for e in errs: print("HAZARD:", e, file=sys.stderr)
    return p.L

HDR = open("standalone__mha_block_cached__near_ridge.s.ref").read().split("; Override")[0]

def desc(name, nv, acc, ns=96):
    return """.amdhsa_kernel %s
  .amdhsa_next_free_vgpr %d
  .amdhsa_next_free_sgpr %d
  .amdhsa_accum_offset %d
  .amdhsa_group_segment_fixed_size 0
  .amdhsa_kernarg_size 64
  .amdhsa_user_sgpr_count 2
  .amdhsa_user_sgpr_kernarg_segment_ptr 1
  .amdhsa_system_sgpr_workgroup_id_x 1
.end_amdhsa_kernel
""" % (name, nv, ns, acc)

def main():
    s = HDR
    s += "; @launch kernel=%s grid=(256,1,1) block=(256,1,1) lds=131072\n" % KA
    s += "; @launch kernel=%s grid=(256,1,1) block=(256,1,1) lds=131072\n" % KB
    s += '.amdgcn_target "amdgcn-amd-amdhsa--gfx950"\n.text\n'
    for name, body in ((KA, kernelA()), (KB, kernelB())):
        s += ".globl %s\n.p2align 8\n.type %s,@function\n%s:\n" % (name, name, name)
        s += "\n".join(body) + "\n"
    s += '.section .rodata,"a"\n.p2align 6\n'
    s += desc(KA, 512, 256)
    s += ".p2align 6\n" + desc(KB, 512, 256)
    open(OUT, "w").write(s)
main()
```

```python
import sys, struct
from asmlib import *

def opt(name, default=""):
    for a in sys.argv[1:]:
        if a.startswith("--" + name + "="): return a.split("=", 1)[1]
    return default
STAMPS = "--stamps" in sys.argv
POL_W = opt("pw"); POL_X = opt("px"); POL_WO = opt("pwo"); POL_OL = opt("pol", "sc1"); POL_OS = opt("pos", "sc1"); POL_KV = opt("pkv", "nt")
def pol(x): return (x.replace("+", " ") + " ") if x else ""
OUT = [a for a in sys.argv[1:] if not a.startswith("--")]
OUT = OUT[0] if OUT else "out.s"
KNAME = "standalone__mha_block_cached__near_ridge_kernel"

aK = 2; aV = 6; vK = 14; vV = 18
aW = 20; aX = 24; vW = 25; vX = 29
STP = 47
LS = 48; S_ = 64; P_ = 96; O_ = 128
AR = 64; XB = 96
QA = 0; Q2A = 64; KA_ = 128; VA_ = 160; ONES = 192
aWo = 20; vWo = 24; vB2 = 28; vPOLL = 29; vOUT = 30; vONE = 31; vCOFF = 32
OA = 64
ACC = 128
sK, sV, sX, sW, sO = 4, 8, 12, 16, 20
sWAVE, sW4K, sKOFF, sVOFF, sWOFF, sXOFF, sCNT, sOOFF = 24, 25, 26, 27, 28, 29, 30, 31
sT = 48
sWK, sXK, sWB = 56, 57, 58
sB, sHP = 59, 60
sST = 62
sSTB = 68
sD, sWO, sOUT = 72, 76, 80
sKS, sWOO, sOLO, sM0B, sCOFF, sQT13, sOUTO = 84, 85, 86, 87, 88, 89, 90
sEX = 92
sWARM, sW1K, sWARM2 = 91, 61, 94
WARM = opt('warm', '1') == '1'; POL_WARM = opt('pwarm')
VMW = 20 if WARM else 16
SCALE = 0.08838834764831845 * 1.4426950408889634
def f2u(f): return struct.unpack("<I", struct.pack("<f", f))[0]

class Prog:
    def __init__(self): self.L = []
    def e(self, s): self.L.append("  " + s)
    def lab(self, s): self.L.append(s + ":")
    def ext(self, l): self.L.extend(l)

def mfma(d, a, b, c): return "v_mfma_f32_16x16x32_bf16 %s, %s, %s, %s" % (d, a, b, c)

def stamp_lines(i):
    if not STAMPS: return []
    return ["  s_memrealtime s[%d:%d]" % (sST, sST + 1), "  s_memtime s[%d:%d]" % (sST + 2, sST + 3), "  s_waitcnt lgkmcnt(0)",
            "  v_writelane_b32 v%d, s%d, %d" % (STP, sST, i), "  v_writelane_b32 v%d, s%d, %d" % (STP, sST + 2, 16 + i)]

def stamp_store(p):
    if not STAMPS: return
    p.e("s_add_u32 s%d, s46, 0x10000000" % sSTB)
    p.e("s_addc_u32 s%d, s47, 0" % (sSTB + 1))
    p.e("s_and_b32 s%d, s%d, 0xffff" % (sSTB + 1, sSTB + 1))
    p.e("s_mov_b32 s%d, 0x100000" % (sSTB + 2))
    p.e("s_mov_b32 s%d, 0x20000" % (sSTB + 3))
    p.e("s_lshl_b32 s%d, s2, 2" % sT)
    p.e("s_add_u32 s%d, s%d, s%d" % (sT, sT, sWAVE))
    p.e("s_lshl_b32 s%d, s%d, 7" % (sT, sT))
    p.e("v_and_b32 v0, 63, v0")
    p.e("v_lshlrev_b32 v1, 2, v0")
    p.e("v_cmp_gt_u32 vcc, 32, v0")
    p.e("s_nop 1")
    p.e("s_and_saveexec_b64 s[%d:%d], vcc" % (sEX, sEX + 1))
    p.e("buffer_store_dword v%d, v1, s[%d:%d], s%d offen" % (STP, sSTB, sSTB + 3, sT))
    p.e("s_waitcnt vmcnt(0)")
    p.e("s_mov_b64 exec, s[%d:%d]" % (sEX, sEX + 1))

def srd(p, base, lo, hi, size):
    p.e("s_mov_b32 s%d, s%d" % (base, lo))
    p.e("s_and_b32 s%d, s%d, 0xffff" % (base + 1, hi))
    p.e("s_mov_b32 s%d, 0x%x" % (base + 2, size))
    p.e("s_mov_b32 s%d, 0x20000" % (base + 3))

class Gaps:
    def __init__(self, mf):
        self.mf = mf
        n = len(mf)
        self.pre = [[] for _ in range(n)]
        self.mem = [[] for _ in range(n)]
        self.val = [[] for _ in range(n)]
    def cost(self, g):
        return 4 * len(self.mem[g]) + sum(8 if x.startswith("v_exp") else 4 for x in self.val[g])
    def lines(self):
        L = []
        for g, m in enumerate(self.mf):
            if m is not None: L.append("  " + m)
            for x in self.pre[g] + self.mem[g] + self.val[g]: L.append("  " + x)
        return L

def dma(voff, srdb, soff, j, policy):
    return "buffer_load_dwordx4 v%d, s[%d:%d], s%d offen offset:%d %slds" % (voff, srdb, srdb + 3, soff, j * 1024, pol(policy))

def kv_dma_group(which, slot):
    if which == "K":
        return (["s_add_u32 m0, s%d, 0x%x" % (sW4K, slot * 16384)], [dma(vK + j, sK, sKOFF, j, POL_KV) for j in range(4)],
                ["s_add_u32 s%d, s%d, 0x4000" % (sKOFF, sKOFF)])
    return (["s_add_u32 m0, s%d, 0x%x" % (sW4K, 65536 + slot * 16384)], [dma(vV + (j & 1), sV, sVOFF, j, POL_KV) for j in range(4)],
            ["s_add_u32 s%d, s%d, 0x4000" % (sVOFF, sVOFF)])

def wx_dma_group(which, slot):
    if which == "W":
        return (["s_add_u32 m0, s%d, 0x%x" % (sW4K, slot * 16384)], [dma(vW + j, sW, sWOFF, j, POL_W) for j in range(4)],
                ["s_add_u32 s%d, s%d, 0x40000" % (sWK, sWK), "s_and_b32 s%d, s%d, 0x3fffff" % (sWK, sWK), "s_add_u32 s%d, s%d, s%d" % (sWOFF, sWK, sWB)])
    return (["s_add_u32 m0, s%d, 0x%x" % (sW4K, 65536 + slot * 16384)], [dma(vX + j, sX, sXOFF, j, POL_X) for j in range(4)],
            ["s_add_u32 s%d, s%d, 64" % (sXK, sXK), "s_and_b32 s%d, s%d, 0x3ff" % (sXK, sXK), "s_add_u32 s%d, s%d, s%d" % (sXOFF, sXK, sWB)])

def place_dma_groups(G, groups, gaps):
    k = 0
    for setup, d, post in groups:
        G.pre[gaps[k] - 1].extend(setup)
        for j in range(4): G.mem[gaps[k + j]].append(d[j])
        G.pre[gaps[k + 3] + 1].extend(post)
        k += 4

def qproj_period(s_slot, par, groups):
    mf = []
    for blk in range(12, 16):
        for qb in range(4):
            mf.append(mfma(ar((blk * 4 + qb) * 4, 4), vr(AR + (blk % 8) * 4, 4), vr(XB + (par ^ 1) * 16 + qb * 4, 4), ar((blk * 4 + qb) * 4, 4)))
    for blk in range(0, 12):
        for qb in range(4):
            mf.append(mfma(ar((blk * 4 + qb) * 4, 4), vr(AR + (blk % 8) * 4, 4), vr(XB + par * 16 + qb * 4, 4), ar((blk * 4 + qb) * 4, 4)))
    G = Gaps(mf)
    so = s_slot * 16384
    for qb in range(4):
        G.mem[qb].append("ds_read_b128 %s, v%d offset:%d" % (vr(XB + par * 16 + qb * 4, 4), aX, so + qb * 1024))
    for blk in range(16):
        h, t, Y = blk // 8, (blk % 8) // 2, blk % 2
        if blk < 4: free = 0
        elif blk < 8: free = (blk - 4) * 4 + 4
        else: free = 16 + (blk - 8) * 4 + 4
        want = max(free, int(blk * 3.4) + 1)
        for jj in range(2):
            G.mem[want + jj].append("ds_read_b64_tr_b16 %s, v%d offset:%d" % (vr(AR + (blk % 8) * 4 + 2 * jj, 2), aW + t, so + jj * 2048 + h * 256 + 8 * Y))
    if groups:
        cand = [g for g in range(2, 62) if len(G.mem[g]) == 0]
        n = 4 * len(groups)
        pick = [cand[int((k + 0.5) * len(cand) / n)] for k in range(n)]
        place_dma_groups(G, groups, pick)
    return G

def auto_lgkm(lines):
    ins = [Ins(l) for l in lines]
    out = []; pend = []; inserts = {}; lastm = None
    for n, i in enumerate(ins):
        if i.kind == "mfma":
            need = None
            regs = set(i.r) | set(i.c)
            for k, (idx, w) in enumerate(pend):
                if regs & w: need = k
            if need is not None:
                at = lastm + 1 if lastm is not None else n
                assert pend[need][0] < at, "LDS read too late for consumer: %s" % i.text
                cnt = min(15, sum(1 for (idx, w) in pend[need + 1:] if idx < at))
                inserts.setdefault(at, []).append(cnt)
                pend = pend[need + 1:]
            lastm = n
        if i.kind in ("dsr", "dsw"): pend.append((n, set(i.w)))
        if i.kind == "wait" and i.lg is not None:
            pend = pend[len(pend) - i.lg:] if i.lg > 0 else []
    for n, l in enumerate(lines):
        if n in inserts: out.append("  s_waitcnt lgkmcnt(%d)" % min(inserts[n]))
        out.append(l)
    return out

def att_period(upar, kslot, khalf, vslot, vhalf, groups, do_qk=True, do_pv=True, do_vread=True, do_kread=True, czero=False, warm=False):
    mf = []
    for qb in range(4):
        for kb in range(2):
            b = qb * 2 + kb
            for t in range(4):
                c = "0" if t == 0 else vr(S_ + b * 4, 4)
                mf.append(mfma(vr(S_ + b * 4, 4), ar(KA_ + (kb * 4 + t) * 4, 4), ar(QA + (t * 4 + qb) * 4, 4), c) if do_qk else None)
    for qb in range(4):
        pf = vr(P_ + upar * 16 + qb * 4, 4)
        for db in range(8):
            o = vr(O_ + (db * 4 + qb) * 4, 4)
            mf.append(mfma(o, ar(VA_ + db * 4, 4), pf, "0" if czero else o) if do_pv else None)
        l = vr(LS + qb * 4, 4)
        mf.append(mfma(l, ar(ONES, 4), pf, "0" if czero else l) if do_pv else None)
    G = Gaps(mf)
    n = len(mf)
    expg = []
    if do_qk:
        expg = [8 + int(round(e * 57 / 31.0)) for e in range(32)]
        for e, g in enumerate(expg):
            b, r = e // 4, e % 4
            G.val[g].append("v_exp_f32 v%d, v%d" % (S_ + b * 4 + r, S_ + b * 4 + r))
    es = set(expg)
    ne = [g for g in range(n) if g not in es]
    if do_vread:
        vg = [g for g in ne if g < 24]
        reads = []
        for db in range(8):
            for jj in range(2):
                reads.append("ds_read_b64_tr_b16 %s, v%d offset:%d" % (ar(VA_ + db * 4 + 2 * jj, 2), aV + db, vslot * 16384 + (vhalf * 32 + 16 * jj) * 256))
        slots = list(vg)
        extra = 16 - len(slots)
        for g in vg[:max(0, extra)]: slots.append(g)
        slots = sorted(slots)[:16]
        for rd, g in zip(reads, slots): G.mem[g].append(rd)
    kg = [g for g in ne if g >= 33 and g <= 62]
    dmag = []
    if groups:
        nd = 4 * len(groups)
        dmag = [kg[int((k + 0.5) * len(kg) / nd)] for k in range(nd)]
    rest = [g for g in kg if g not in dmag]
    if do_kread:
        reads = []
        for kb in range(2):
            for t in range(4):
                reads.append("ds_read_b128 %s, v%d offset:%d" % (ar(KA_ + (kb * 4 + t) * 4, 4), aK + t, kslot * 16384 + (khalf * 2 + kb) * 4096))
        sel = [rest[int(k * len(rest) / 8)] for k in range(8)]
        for rd, g in zip(reads, sel): G.mem[g].append(rd)
    if groups: place_dma_groups(G, groups, dmag)
    if do_qk:
        for b in range(8):
            qb, kb = b // 2, b % 2
            for hh in range(2):
                ge = expg[b * 4 + hh * 2 + 1]
                g = [g for g in ne if g > ge and G.cost(g) <= 4][0]
                G.val[g].append("v_cvt_pk_bf16_f32 v%d, v%d, v%d" % (P_ + (upar ^ 1) * 16 + qb * 4 + kb * 2 + hh, S_ + b * 4 + hh * 2, S_ + b * 4 + hh * 2 + 1))
    if warm and WARM:
        g = [g for g in ne if 24 <= g < 31 and G.cost(g) <= 4][0]
        G.pre[g - 1].append("s_add_u32 m0, s%d, 0x20000" % sW1K)
        G.mem[g].insert(0, "buffer_load_dwordx4 v1, s[%d:%d], s%d offen %slds" % (sWO, sWO + 3, sWARM, pol(POL_WARM)))
        G.pre[g + 1].append("s_add_u32 s%d, s%d, 0x400" % (sWARM, sWARM))
    G.pre[31].append("s_waitcnt lgkmcnt(0)")
    return G

def epilogue(first):
    ep = ["  s_nop 7"]
    for qb in range(4): ep.append("  v_rcp_f32 v%d, v%d" % (34 + 2 * qb, LS + qb * 4))
    ep.append("  s_nop 0")
    for qb in range(4): ep.append("  v_mov_b32 v%d, v%d" % (35 + 2 * qb, 34 + 2 * qb))
    k = 0
    TT = [96, 100, 104, 108, 112, 116, 120, 124] if not first else None
    for t in range(4):
        grp = []
        for qb in range(4):
            X = O_ + ((2 * t) * 4 + qb) * 4; Y = O_ + ((2 * t + 1) * 4 + qb) * 4
            for base in (X, X + 2, Y, Y + 2):
                ep.append("  v_pk_mul_f32 v[%d:%d], v[%d:%d], v[%d:%d]" % (base, base + 1, base, base + 1, 34 + 2 * qb, 35 + 2 * qb))
        for qb in range(4):
            X = O_ + ((2 * t) * 4 + qb) * 4; Y = O_ + ((2 * t + 1) * 4 + qb) * 4
            T = [20, 24, 28, 42][qb] if False else None
            T = X
            ep.append("  v_cvt_pk_bf16_f32 v%d, v%d, v%d" % (X, X, X + 1))
            ep.append("  v_cvt_pk_bf16_f32 v%d, v%d, v%d" % (X + 1, X + 2, X + 3))
            ep.append("  v_cvt_pk_bf16_f32 v%d, v%d, v%d" % (X + 2, Y, Y + 1))
            ep.append("  v_cvt_pk_bf16_f32 v%d, v%d, v%d" % (X + 3, Y + 2, Y + 3))
            ep.append("  buffer_store_dwordx4 v[%d:%d], v1, s[%d:%d], s%d offen offset:%d %s" % (X, X + 3, sO, sO + 3, sOOFF, qb * 1024, pol(POL_OS)))
        ep.append("  s_add_u32 s%d, s%d, 0x4000" % (sOOFF, sOOFF))
    return ep

def signal(val_reg_setup):
    L = ["  s_cmp_lg_u32 s%d, 0" % sWAVE, "  s_cbranch_scc1 %s" % val_reg_setup[0],
         "  s_mov_b64 exec, 1",
         "  v_mov_b32 v%d, 0x%x" % (vONE, val_reg_setup[1]),
         "  buffer_atomic_add v%d, v%d, s[%d:%d], 0 offen sc1" % (vONE, vCOFF, sD, sD + 3),
         "  s_mov_b64 exec, -1",
         val_reg_setup[0] + ":"]
    return L

def poll_check(label, shift):
    L = ["  v_readfirstlane_b32 s%d, v%d" % (sT, vPOLL),
         "  s_bfe_u32 s%d, s%d, 0x%x" % (sT, sT, (8 << 16) | shift),
         "  s_cmp_eq_u32 s%d, 4" % sT,
         "  s_cbranch_scc1 %s_ok" % label,
         "%s_spin:" % label,
         "  s_sleep 8",
         "  buffer_load_dword v%d, off, s[%d:%d], s%d sc1" % (vPOLL, sD, sD + 3, sCOFF),
         "  s_waitcnt vmcnt(0)",
         "  v_readfirstlane_b32 s%d, v%d" % (sT, vPOLL),
         "  s_bfe_u32 s%d, s%d, 0x%x" % (sT, sT, (8 << 16) | shift),
         "  s_cmp_eq_u32 s%d, 4" % sT,
         "  s_cbranch_scc0 %s_spin" % label,
         "%s_ok:" % label]
    return L

def op_issue(slot):
    ops = []
    for qb in range(8 if opt("onob") != "1" else 0):
        ops.append(([], "buffer_load_dwordx4 %s, v%d, s[%d:%d], s%d offen offset:%d %s" % (ar(slot * 32 + qb * 4, 4), 1 if qb < 4 else vB2, sO, sO + 3, sOLO, (qb % 4) * 1024, pol(POL_OL))))
    for m in range(4 if opt("onow") != "1" else 0):
        pre = ["s_add_u32 m0, s%d, 0x%x" % (sM0B, slot * 4096)] if m == 0 else []
        ops.append((pre, "buffer_load_dwordx4 v%d, s[%d:%d], s%d offen offset:%d %slds" % (vWo + m, sWO, sWO + 3, sWOO, m * 1024, pol(POL_WO))))
    return ops
def op_advance(delta):
    L = []
    if isinstance(delta, int): L.append("s_add_u32 s%d, s%d, %d" % (sKS, sKS, delta))
    else:
        L.append("s_cmp_eq_u32 s%d, %d" % (sCNT, delta[1]))
        L.append("s_cselect_b32 s%d, -23, 5" % sT)
        L.append("s_add_u32 s%d, s%d, s%d" % (sKS, sKS, sT))
    if opt("ohot") == "1":
        L.append("s_and_b32 s%d, s%d, 3" % (sT + 1, sKS))
        L.append("s_lshl_b32 s%d, s%d, 15" % (sWOO, sT + 1))
        L.append("s_lshl_b32 s%d, s%d, 14" % (sOLO, sT + 1))
    else:
        L.append("s_lshl_b32 s%d, s%d, 15" % (sWOO, sKS))
        L.append("s_lshl_b32 s%d, s%d, 14" % (sOLO, sKS))
    L.append("s_add_u32 s%d, s%d, s%d" % (sOLO, sOLO, sQT13))
    return L
def op_areads(slot, par):
    R = []
    for nb in range(4):
        for jj in range(2):
            R.append("ds_read_b64_tr_b16 %s, v%d offset:%d" % (vr(OA + par * 16 + nb * 4 + 2 * jj, 2), aWo + nb, slot * 4096 + jj * 2048))
    return R
def op_step(c, vm, issue, delta, last=False, poll=False):
    mf = []
    for nb in range(4):
        for qb in range(8):
            acc = vr(ACC + (nb * 8 + qb) * 4, 4)
            mf.append(mfma(acc, vr(OA + (c % 2) * 16 + nb * 4, 4), ar(c * 32 + qb * 4, 4), acc))
    G = Gaps(mf)
    if not last:
        for k, x in enumerate(op_areads((c + 1) % 8, (c + 1) % 2)): G.mem[1 + 3 * k].append(x)
    if issue:
        ops = op_issue((c + 5) % 8)
        free = [g for g in range(1, 30) if not G.mem[g]]
        sel = [free[int(k * len(free) / 12)] for k in range(len(ops))]
        for (pre, op), g in zip(ops, sel):
            G.pre[g - 1].extend(pre); G.mem[g].append(op)
        G.pre[(sel[-1] if sel else 20) + 1].extend(op_advance(delta))
    if poll:
        G.mem[30].append("buffer_load_dword v%d, off, s[%d:%d], s%d sc1" % (vPOLL, sD, sD + 3, sCOFF))
    return ["  s_waitcnt vmcnt(%d)" % vm] + G.lines() + ["  s_waitcnt lgkmcnt(0)"]

def kernel():
    p = Prog(); errs = []
    p.e("s_cmp_ge_u32 s2, 256")
    p.e("s_cbranch_scc1 L_end")
    p.e("s_load_dwordx16 s[32:47], s[0:1], 0")
    p.e("v_lshrrev_b32 v33, 6, v0")
    p.e("v_and_b32 v34, 63, v0")
    p.e("v_readfirstlane_b32 s%d, v33" % sWAVE)
    p.e("v_and_b32 v35, 15, v34")
    p.e("v_lshrrev_b32 v36, 4, v34")
    p.e("v_lshrrev_b32 v37, 2, v35")
    p.e("v_and_b32 v38, 3, v34")
    p.e("v_lshlrev_b32 v1, 4, v34")
    if STAMPS: p.e("v_mov_b32 v%d, 0" % STP)
    p.e("s_and_b32 s%d, s2, 7" % sT)
    p.e("s_lshr_b32 s%d, s2, 3" % (sT + 1))
    p.e("s_lshl_b32 s%d, s%d, 1" % (sT, sT))
    p.e("s_lshr_b32 s%d, s%d, 4" % (sT + 2, sT + 1))
    p.e("s_add_u32 s%d, s%d, s%d" % (sB, sT, sT + 2))
    p.e("s_and_b32 s%d, s%d, 15" % (sHP, sT + 1))
    p.e("s_lshl_b32 s%d, s%d, 12" % (sW4K, sWAVE))
    p.e("v_lshrrev_b32 v40, 5, v34")
    p.e("v_and_b32 v41, 31, v34")
    for j in range(4):
        p.e("v_add_u32 v39, %d, v40" % (2 * (j & 1)))
        p.e("v_lshlrev_b32 v39, 2, v39")
        p.e("v_xor_b32 v39, v39, v41")
        p.e("v_lshlrev_b32 v39, 4, v39")
        p.e("v_lshl_add_u32 v39, v40, 13, v39")
        p.e("v_add_u32 v%d, %d, v39" % (vW + j, j * 15360))
    p.e("v_lshrrev_b32 v39, 3, v34")
    p.e("v_and_b32 v39, 2, v39")
    p.e("v_xor_b32 v39, v39, v38")
    p.e("v_lshlrev_b32 v39, 4, v39")
    p.e("v_lshrrev_b32 v40, 2, v34")
    p.e("v_lshl_add_u32 v39, v40, 10, v39")
    for j in range(4): p.e("v_add_u32 v%d, %d, v39" % (vX + j, j * 15360))
    p.e("s_lshl_b32 s%d, s%d, 16" % (sWB, sWAVE))
    p.e("s_lshl_b32 s%d, s%d, 18" % (sWK, sHP))
    p.e("s_lshl_b32 s%d, s%d, 6" % (sXK, sHP))
    p.e("s_add_u32 s%d, s%d, s%d" % (sWOFF, sWK, sWB))
    p.e("s_add_u32 s%d, s%d, s%d" % (sXOFF, sXK, sWB))
    p.e("s_waitcnt lgkmcnt(0)")
    p.e("s_lshl_b32 s%d, s%d, 18" % (sT + 3, sB))
    p.e("s_add_u32 s32, s32, s%d" % (sT + 3)); p.e("s_addc_u32 s33, s33, 0")
    srd(p, sX, 32, 33, 0x40000)
    p.e("s_lshl_b32 s%d, s%d, 9" % (sT + 3, sHP))
    p.e("s_add_u32 s38, s38, s%d" % (sT + 3)); p.e("s_addc_u32 s39, s39, 0")
    srd(p, sW, 38, 39, 0x400000)
    p.e("s_sub_u32 s%d, s%d, s%d" % (sW + 2, sW + 2, sT + 3))
    p.ext(stamp_lines(0))
    for s in range(3):
        for which in ("W", "X"):
            setup, d, post = wx_dma_group(which, s)
            for x in setup: p.e(x)
            p.e("s_nop 0")
            for x in d: p.e(x)
            for x in post: p.e(x)
    MW = opt("mwarm", "1") == "1"
    p.e("s_and_b32 s%d, s%d, 7" % (sT + 3, sHP))
    p.e("s_lshl_b32 s%d, s%d, 7" % (sT + 3, sT + 3))
    p.e("s_add_u32 s40, s40, s%d" % (sT + 3)); p.e("s_addc_u32 s41, s41, 0")
    srd(p, sWO, 40, 41, 0x400000)
    p.e("s_sub_u32 s%d, s%d, s%d" % (sWO + 2, sWO + 2, sT + 3))
    p.e("s_lshl_b32 s%d, s%d, 10" % (sW1K, sWAVE))
    if MW:
        p.e("s_lshl_b32 s%d, s2, 2" % sT); p.e("s_add_u32 s%d, s%d, s%d" % (sT, sT, sWAVE)); p.e("s_lshl_b32 s%d, s%d, 12" % (sT, sT))
        p.e("s_add_u32 m0, s%d, 0x20000" % sW1K)
        p.e("s_nop 0")
        for j in range(4):
            p.e("buffer_load_dwordx4 v1, s[%d:%d], s%d offen lds" % (sWO, sWO + 3, sT))
            p.e("s_add_u32 s%d, s%d, 0x400" % (sT, sT))
    for t in range(4):
        p.e("v_add_u32 v39, %d, v36" % (4 * t))
        p.e("v_xor_b32 v39, v39, v35")
        p.e("v_lshlrev_b32 v39, 4, v39")
        p.e("v_lshl_add_u32 v%d, v35, 8, v39" % (aK + t))
    p.e("v_and_b32 v40, 1, v36")
    p.e("v_lshl_add_u32 v40, v40, 2, v37")
    p.e("v_lshl_add_u32 v41, v36, 2, v37")
    p.e("v_lshlrev_b32 v41, 8, v41")
    p.e("v_lshl_add_u32 v41, v38, 3, v41")
    p.e("v_add_u32 v41, 0x10000, v41")
    for db in range(8):
        p.e("v_xor_b32 v39, %d, v40" % db)
        p.e("v_lshl_add_u32 v%d, v39, 5, v41" % (aV + db))
    for j in range(4):
        p.e("v_add_u32 v39, %d, v36" % (4 * j))
        p.e("v_xor_b32 v39, v39, v35")
        p.e("v_lshlrev_b32 v39, 4, v39")
        p.e("v_lshl_add_u32 v%d, v36, 8, v39" % (vK + j))
    for j in range(2):
        p.e("v_add_u32 v39, %d, v36" % (4 * j))
        p.e("v_lshlrev_b32 v39, 1, v39")
        p.e("v_xor_b32 v39, v39, v35")
        p.e("v_lshlrev_b32 v39, 4, v39")
        p.e("v_lshl_add_u32 v%d, v36, 8, v39" % (vV + j))
    p.e("v_lshl_add_u32 v41, v36, 3, v37")
    p.e("v_lshlrev_b32 v41, 9, v41")
    p.e("v_lshl_add_u32 v41, v38, 4, v41")
    for t in range(4):
        p.e("v_xor_b32 v39, %d, v37" % t)
        p.e("v_lshl_add_u32 v%d, v39, 6, v41" % (aW + t))
    p.e("v_lshrrev_b32 v39, 1, v35")
    p.e("v_and_b32 v39, 2, v39")
    p.e("v_xor_b32 v39, v39, v36")
    p.e("v_lshlrev_b32 v39, 4, v39")
    p.e("v_lshl_add_u32 v39, v35, 6, v39")
    p.e("v_add_u32 v39, 0x10000, v39")
    p.e("v_add_u32 v%d, s%d, v39" % (aX, sW4K))
    p.e("s_lshl_b32 s%d, s%d, 4" % (sT + 2, sB))
    p.e("s_add_u32 s%d, s%d, s%d" % (sT + 2, sT + 2, sHP))
    p.e("s_lshl_b32 s%d, s%d, 19" % (sT + 3, sT + 2))
    p.e("s_add_u32 s34, s34, s%d" % (sT + 3)); p.e("s_addc_u32 s35, s35, 0")
    p.e("s_add_u32 s36, s36, s%d" % (sT + 3)); p.e("s_addc_u32 s37, s37, 0")
    srd(p, sK, 34, 35, 0x80000)
    srd(p, sV, 36, 37, 0x80000)
    p.e("s_lshl_b32 s%d, s%d, 21" % (sT + 3, sB))
    p.e("s_add_u32 s%d, s46, s%d" % (sT + 4, sT + 3)); p.e("s_addc_u32 s%d, s47, 0" % (sT + 5))
    srd(p, sO, sT + 4, sT + 5, 0x200000)
    srd(p, sD, 44, 45, 256)
    p.e("s_and_b32 s%d, s%d, 7" % (sT + 3, sHP))
    p.e("s_lshl_b32 s%d, s%d, 7" % (sT + 3, sT + 3))
    srd(p, sOUT, 42, 43, 0x400000)
    p.e("s_lshr_b32 s%d, s%d, 3" % (sT + 4, sHP))
    p.e("s_lshl_b32 s%d, s%d, 13" % (sQT13, sT + 4))
    p.e("s_lshl_b32 s%d, s%d, 18" % (sOUTO, sB))
    p.e("s_lshl_b32 s%d, s%d, 17" % (sT + 5, sT + 4)); p.e("s_add_u32 s%d, s%d, s%d" % (sOUTO, sOUTO, sT + 5))
    p.e("s_lshl_b32 s%d, s%d, 15" % (sT + 5, sWAVE)); p.e("s_add_u32 s%d, s%d, s%d" % (sOUTO, sOUTO, sT + 5))
    p.e("s_add_u32 s%d, s%d, s%d" % (sOUTO, sOUTO, sT + 3))
    p.e("s_lshl_b32 s%d, s%d, 2" % (sCOFF, sB)); p.e("s_add_u32 s%d, s%d, s%d" % (sCOFF, sCOFF, sWAVE)); p.e("s_lshl_b32 s%d, s%d, 2" % (sCOFF, sCOFF))
    p.e("s_lshl_b32 s%d, s%d, 15" % (sM0B, sWAVE))
    p.e("s_lshr_b32 s%d, s2, 3" % sT)
    p.e("s_lshl_b32 s%d, s%d, 17" % (sWARM, sT))
    p.e("s_lshl_b32 s%d, s%d, 15" % (sT, sWAVE))
    p.e("s_add_u32 s%d, s%d, s%d" % (sWARM, sWARM, sT))
    p.e("s_mov_b32 s%d, s%d" % (sWARM2, sWARM))
    p.e("s_mov_b32 s%d, 0x80000000" % sWARM)
    p.e("s_mov_b32 s%d, s%d" % (sKOFF, sW4K))
    p.e("s_mov_b32 s%d, s%d" % (sVOFF, sW4K))
    p.e("s_lshl_b32 s%d, s%d, 17" % (sOOFF, sHP))
    p.e("s_add_u32 s%d, s%d, s%d" % (sOOFF, sOOFF, sW4K))
    for r in range(256): p.e("v_accvgpr_write_b32 a%d, 0" % r)
    for r in range(AR + 16, AR + 32): p.e("v_mov_b32 v%d, 0" % r)
    for r in range(XB + 16, XB + 32): p.e("v_mov_b32 v%d, 0" % r)
    p.e("s_waitcnt vmcnt(%d)" % (20 if MW else 16))
    p.e("s_barrier")
    p.ext(stamp_lines(1))
    def qp(s, groups, vm):
        L = auto_lgkm(qproj_period(s % 4, s % 2, groups).lines())
        return L + ["  s_waitcnt vmcnt(%d) lgkmcnt(0)" % vm, "  s_barrier"]
    p.e("s_mov_b32 s%d, 3" % sCNT)
    body = []
    for s in range(4):
        sl = (s + 3) % 4
        body += qp(s, [wx_dma_group("W", sl), wx_dma_group("X", sl)], 16)
    errs += check(body + body, "qproj")
    p.lab("L_qloop"); p.ext(body)
    p.e("s_sub_u32 s%d, s%d, 1" % (sCNT, sCNT))
    p.e("s_cmp_lg_u32 s%d, 0" % sCNT)
    p.e("s_cbranch_scc1 L_qloop")
    tail = []
    tail += qp(12, [wx_dma_group("W", 3), wx_dma_group("X", 3)], 16)
    tail += qp(13, [kv_dma_group("K", 0)], 12)
    tail += qp(14, [kv_dma_group("K", 1), kv_dma_group("V", 0)], 12)
    tail += qp(15, [kv_dma_group("K", 2), kv_dma_group("V", 1)], 16)
    for blk in range(12, 16):
        for qb in range(4):
            tail.append("  " + mfma(ar((blk * 4 + qb) * 4, 4), vr(AR + (blk % 8) * 4, 4), vr(XB + 16 + qb * 4, 4), ar((blk * 4 + qb) * 4, 4)))
    for which, sl in (("K", 3), ("V", 2)):
        setup, d, post = kv_dma_group(which, sl)
        tail += ["  " + x for x in setup] + ["  s_nop 0"] + ["  " + x for x in d] + ["  " + x for x in post]
    if WARM:
        for k in range(2):
            tail += ["  s_add_u32 m0, s%d, 0x20000" % sW1K, "  s_nop 0",
                     "  buffer_load_dwordx4 v1, s[%d:%d], s%d offen %slds" % (sWO, sWO + 3, sWARM, pol(POL_WARM)),
                     "  s_add_u32 s%d, s%d, 0x400" % (sWARM, sWARM)]
    tail += stamp_lines(2)
    conv = ["v_mov_b32 v34, 0x%x" % f2u(SCALE), "v_mov_b32 v35, 0x%x" % f2u(SCALE), "v_mov_b32 v33, 0x3f803f80"]
    frs = [(h, t, qb) for h in (0, 1) for t in range(4) for qb in range(4)]
    for i in range(0, 32, 4):
        grp = frs[i:i + 4]
        for k, (h, t, qb) in enumerate(grp):
            X = ((h * 8 + 2 * t) * 4 + qb) * 4; Y = X + 16
            T = 64 + k * 8
            for r in range(4): conv.append("v_accvgpr_read_b32 v%d, a%d" % (T + r, X + r))
            for r in range(4): conv.append("v_accvgpr_read_b32 v%d, a%d" % (T + 4 + r, Y + r))
        for k in range(4):
            T = 64 + k * 8
            for r in range(0, 8, 2): conv.append("v_pk_mul_f32 v[%d:%d], v[%d:%d], v[34:35]" % (T + r, T + r + 1, T + r, T + r + 1))
        for k, (h, t, qb) in enumerate(grp):
            T = 64 + k * 8
            dst = O_ + h * 64 + (t * 4 + qb) * 4
            for r in range(4): conv.append("v_cvt_pk_bf16_f32 v%d, v%d, v%d" % (dst + r, T + 2 * r, T + 2 * r + 1))
    for r in range(128): conv.append("v_accvgpr_write_b32 a%d, v%d" % (r, O_ + r))
    for r in range(4): conv.append("v_accvgpr_write_b32 a%d, v33" % (ONES + r))
    kfr = []
    for kb in range(2):
        for t in range(4):
            kfr.append("ds_read_b128 %s, v%d offset:%d" % (ar(KA_ + (kb * 4 + t) * 4, 4), aK + t, kb * 4096))
    idx = len(conv) - 132
    conv = conv[:idx] + kfr + conv[idx:]
    cl, e2 = autofix(tail[-30:], ["  " + x for x in conv] + ["  s_waitcnt lgkmcnt(0)"], "conv")
    errs += e2
    tail += cl
    p.ext(tail)
    p.ext(stamp_lines(3))
    p.e("v_and_b32 v34, 63, v0")
    p.e("v_and_b32 v35, 15, v34"); p.e("v_lshrrev_b32 v36, 4, v34"); p.e("v_lshrrev_b32 v37, 2, v35"); p.e("v_and_b32 v38, 3, v34")
    p.e("v_lshl_add_u32 v40, v36, 2, v37")
    p.e("v_lshrrev_b32 v41, 1, v40"); p.e("v_and_b32 v41, 3, v41")
    p.e("v_lshlrev_b32 v40, 7, v40"); p.e("v_lshl_add_u32 v40, v38, 3, v40"); p.e("v_add_u32 v40, s%d, v40" % sM0B)
    for nb in range(4):
        p.e("v_xor_b32 v39, %d, v41" % nb)
        p.e("v_lshl_add_u32 v%d, v39, 5, v40" % (aWo + nb))
    p.e("v_lshlrev_b32 v39, 1, v36"); p.e("v_and_b32 v40, 7, v34"); p.e("v_xor_b32 v39, v39, v40"); p.e("v_lshlrev_b32 v39, 4, v39")
    p.e("v_lshrrev_b32 v40, 3, v34"); p.e("v_lshl_add_u32 v39, v40, 10, v39")
    for m in range(4): p.e("v_add_u32 v%d, %d, v39" % (vWo + m, m * 7168))
    p.e("v_add_u32 v%d, 0x1000, v1" % vB2)
    p.e("v_lshlrev_b32 v%d, 10, v35" % vOUT); p.e("v_lshl_add_u32 v%d, v36, 3, v%d" % (vOUT, vOUT))
    p.e("s_lshr_b32 s%d, s%d, 2" % (sT, sHP)); p.e("s_lshl_b32 s%d, s%d, 2" % (sT + 1, sB)); p.e("s_add_u32 s%d, s%d, s%d" % (sT, sT, sT + 1)); p.e("s_lshl_b32 s%d, s%d, 2" % (sT, sT))
    p.e("v_mov_b32 v%d, s%d" % (vCOFF, sT))
    G = att_period(1, 0, 1, 0, 0, [], do_qk=True, do_pv=False, do_vread=False)
    pro = G.lines() + ["  s_waitcnt vmcnt(%d) lgkmcnt(0)" % (18 if WARM else 16), "  s_barrier"]
    pro, e2 = autofix(tail[-40:], pro, "attpro"); errs += e2
    p.ext(pro)
    p.ext(stamp_lines(4))
    p.e("s_mov_b32 s%d, 0" % sCNT)
    sw = ["  v_accvgpr_mov_b32 a%d, a%d" % (QA + r, Q2A + r) for r in range(64)]
    if opt("l2warm", "1") == "1": sw.append("  s_mov_b32 s%d, s%d" % (sWARM, sWARM2))
    parts = []
    for tp in range(4):
        G0 = att_period(0, (tp + 1) % 4, 0, tp % 4, 0, [kv_dma_group("K", tp % 4)], warm=True)
        G1 = att_period(1, (tp + 1) % 4, 1, tp % 4, 1, [kv_dma_group("V", (tp + 3) % 4)], warm=True)
        parts.append((G0.lines() + ["  s_waitcnt lgkmcnt(0)"], G1.lines()))
    endw = ["  s_waitcnt vmcnt(%d) lgkmcnt(0)" % VMW, "  s_barrier"]
    flat = []
    for l0, l1 in parts: flat += l0 + l1 + endw
    errs += check(flat + flat, "att")
    cz = att_period(0, 1, 0, 0, 0, [kv_dma_group("K", 0)], czero=True, warm=True).lines() + ["  s_waitcnt lgkmcnt(0)"]
    ep1 = epilogue(True)
    errs += check(parts[3][0] + sw + parts[3][1] + endw + ep1 + cz + parts[0][1], "attsw")
    endp = att_period(1, 0, 1, 3, 1, [], do_qk=False, do_kread=False)
    endp.mem[0].append("buffer_load_dword v%d, off, s[%d:%d], s%d sc1" % (vPOLL, sD, sD + 3, sCOFF))
    endl, e2 = autofix(parts[3][0], endp.lines(), "endp"); errs += e2
    p.lab("L_aloop")
    for tp in range(4):
        l0, l1 = parts[tp]
        if tp == 0:
            p.e("s_and_b32 s%d, s%d, 3" % (sT, sCNT)); p.e("s_cmp_eq_u32 s%d, 0" % sT); p.e("s_cbranch_scc1 L_cz")
        p.ext(l0)
        if tp == 0: p.lab("L_cz_ret")
        if tp == 3:
            p.e("s_cmp_eq_u32 s%d, 3" % sCNT); p.e("s_cbranch_scc1 L_qswitch")
            p.e("s_cmp_eq_u32 s%d, 7" % sCNT); p.e("s_cbranch_scc1 L_endp")
            p.lab("L_qswitch_ret")
        p.ext(l1)
        if tp in (0, 1):
            p.e("s_cmp_eq_u32 s%d, 4" % sCNT); p.e("s_cbranch_scc1 L_w32_%d" % tp)
            p.e("s_waitcnt vmcnt(%d) lgkmcnt(0)" % VMW)
            p.lab("L_w32_%d_ret" % tp)
            p.e("s_barrier")
        else:
            p.ext(endw)
        if tp == 2:
            p.e("s_cmp_eq_u32 s%d, 4" % sCNT); p.e("s_cbranch_scc1 L_sig1")
            p.lab("L_sig1_ret")
    p.e("s_cmp_eq_u32 s%d, 3" % sCNT)
    p.e("s_cbranch_scc1 L_epi1")
    p.lab("L_epi1_ret")
    p.e("s_add_u32 s%d, s%d, 1" % (sCNT, sCNT))
    p.e("s_branch L_aloop")
    p.lab("L_cz"); p.ext(cz); p.e("s_branch L_cz_ret")
    p.lab("L_qswitch"); p.ext(sw); p.e("s_branch L_qswitch_ret")
    for tp in (0, 1):
        p.lab("L_w32_%d" % tp); p.e("s_waitcnt vmcnt(%d) lgkmcnt(0)" % (VMW + 16)); p.e("s_branch L_w32_%d_ret" % tp)
    p.lab("L_sig1"); p.ext(signal(("L_sig1_skip", 1))); p.e("s_branch L_sig1_ret")
    p.lab("L_epi1"); p.ext(stamp_lines(5)); p.ext(ep1); p.ext(stamp_lines(6)); p.e("s_branch L_epi1_ret")
    p.lab("L_endp")
    p.ext(endl)
    p.e("s_waitcnt vmcnt(0) lgkmcnt(0)")
    p.e("s_barrier")
    p.ext(stamp_lines(7))
    SYNC = opt("sync", "0")
    def issue_step(n, delta):
        L = []
        for pre, op in op_issue(n % 8):
            for x in pre: L.append("  " + x); L.append("  s_nop 0")
            L.append("  " + op)
        L += ["  " + x for x in op_advance(delta)]
        return L
    if SYNC == "0":
        p.ext(poll_check("L_f1", 0))
        p.e("s_lshl_b32 s%d, s%d, 5" % (sKS, sWAVE))
        for x in op_advance(0): p.e(x)
        seq = issue_step(0, 1) + issue_step(1, 1) + issue_step(2, 1)
        seq += epilogue(False)
        seq += issue_step(3, 5) + issue_step(4, 1)
        seq += ["  s_nop 1"] + ["  v_mov_b32 v%d, 0" % (ACC + r) for r in range(128)]
        errs += check(endl + seq, "ep2")
        p.ext(seq)
        p.e("s_waitcnt vmcnt(24)")
        p.e("s_barrier")
        p.ext(signal(("L_sig2_skip", 0x10000)))
        p.ext(stamp_lines(8))
    else:
        seq = epilogue(False)
        seq += ["  s_nop 1"] + ["  v_mov_b32 v%d, 0" % (ACC + r) for r in range(128)]
        errs += check(endl + seq, "ep2")
        p.ext(seq)
        p.ext(stamp_lines(11))
        p.e("s_waitcnt vmcnt(0)")
        p.ext(stamp_lines(12))
        p.e("s_barrier")
        p.ext(signal(("L_sig2_skip", 0x10000)))
        p.e("s_lshl_b32 s%d, s%d, 4" % (sT + 2, sB))
        p.lab("L_sync")
        p.e("buffer_load_dwordx4 v[64:67], off, s[%d:%d], s%d sc1" % (sD, sD + 3, sT + 2))
        p.e("s_waitcnt vmcnt(0)")
        p.e("v_and_b32 v64, v64, v65"); p.e("v_and_b32 v66, v66, v67"); p.e("v_and_b32 v64, v64, v66")
        p.e("s_nop 0")
        p.e("v_readfirstlane_b32 s%d, v64" % sT)
        p.e("s_cmp_eq_u32 s%d, 0x40004" % sT)
        p.e("s_cbranch_scc1 L_sync_ok")
        p.e("s_sleep 4")
        p.e("s_branch L_sync")
        p.lab("L_sync_ok")
        p.ext(stamp_lines(8))
        p.e("s_lshl_b32 s%d, s%d, 5" % (sKS, sWAVE))
        for x in op_advance(0): p.e(x)
        p.ext(issue_step(0, 1) + issue_step(1, 1) + issue_step(2, 1) + issue_step(3, 5) + issue_step(4, 1))
        p.e("v_mov_b32 v%d, 0x40004" % vPOLL)
        p.e("s_waitcnt vmcnt(48)")
        p.ext(stamp_lines(13))
    for x in op_areads(0, 0): p.e(x)
    p.e("s_waitcnt lgkmcnt(0)")
    p.e("s_mov_b32 s%d, 0" % sCNT)
    steps = []
    for c in range(8):
        delta = ("sel", 1) if c == 2 else (5 if c == 6 else 1)
        steps.append(op_step(c, 36, True, delta, poll=(c == 4 and SYNC == '0')))
    flat = sum(steps, [])
    errs += check(flat + flat, "oproj")
    p.lab("L_oloop")
    for c in range(8):
        if c == 3:
            p.e("s_cmp_eq_u32 s%d, 1" % sCNT); p.e("s_cbranch_scc1 L_f2chk"); p.lab("L_f2chk_ret")
        p.ext(steps[c])
    p.e("s_add_u32 s%d, s%d, 1" % (sCNT, sCNT))
    p.e("s_cmp_lt_u32 s%d, 3" % sCNT)
    p.e("s_cbranch_scc1 L_oloop")
    tl = []
    vms = [36, 36, 36, 36, 24, 12, 0, 0]
    for c in range(8):
        tl += op_step(c, vms[c], c <= 2, 1, last=(c == 7))
    errs += check(flat + tl, "oprojtail")
    p.ext(tl)
    p.ext(stamp_lines(9))
    p.e("s_barrier")
    p.e("v_add_u32 v33, s%d, v1" % sM0B)
    p.e("s_lshl_b32 s%d, s%d, 11" % (sT, sWAVE))
    p.e("v_add_u32 v34, s%d, v1" % sT)
    p.e("v_add_u32 v35, 0x10000, v34")
    red = ["s_nop 4"]
    for blk in range(32):
        red.append("ds_write_b128 v33, %s offset:%d" % (vr(ACC + blk * 4, 4), blk * 1024))
    red.append("s_waitcnt lgkmcnt(0)")
    red.append("s_barrier")
    for src in range(4):
        for nb in range(4):
            for q2 in range(2):
                red.append("ds_read_b128 %s, v%d offset:%d" % (vr(128 + (src * 8 + nb * 2 + q2) * 4, 4), 34 if src < 2 else 35, (src % 2) * 32768 + (nb * 8 + q2) * 1024))
        red.append("s_waitcnt lgkmcnt(0)")
    for k in range(8):
        nb, q2 = k // 2, k % 2
        for r in range(4):
            a = 128 + k * 4 + r
            red.append("v_add_f32 v%d, v%d, v%d" % (a, a, a + 32))
            red.append("v_add_f32 v%d, v%d, v%d" % (a + 64, a + 64, a + 96))
        for r in range(4):
            a = 128 + k * 4 + r
            red.append("v_add_f32 v%d, v%d, v%d" % (a, a, a + 64))
        red.append("v_cvt_pk_bf16_f32 v%d, v%d, v%d" % (64 + k * 2, 128 + k * 4, 128 + k * 4 + 1))
        red.append("v_cvt_pk_bf16_f32 v%d, v%d, v%d" % (65 + k * 2, 128 + k * 4 + 2, 128 + k * 4 + 3))
        if q2 == 0: vo = vOUT
        else: vo = 36
        red.append("buffer_store_dwordx2 v[%d:%d], v%d, s[%d:%d], s%d offen offset:%d" % (64 + k * 2, 65 + k * 2, vo, sOUT, sOUT + 3, sOUTO, nb * 32))
    p.e("v_add_u32 v36, 0x4000, v%d" % vOUT)
    rl = ["  " + x for x in red]
    errs += check(tl[-40:] + rl, "red")
    p.ext(rl)
    p.e("s_waitcnt vmcnt(0)")
    p.ext(stamp_lines(10))
    stamp_store(p)
    p.lab("L_end")
    p.e("s_endpgm")
    p.lab("L_f2chk"); p.ext(poll_check("L_f2", 16)); p.e("s_branch L_f2chk_ret")
    for e in errs: print("HAZARD:", e, file=sys.stderr)
    return p.L

HDR = open("standalone__mha_block_cached__near_ridge.s.ref").read().split("; Override")[0]
def main():
    s = HDR + "; @launch grid=(256,1,1) block=(256,1,1) lds=163840\n"
    s += '.amdgcn_target "amdgcn-amd-amdhsa--gfx950"\n.text\n'
    s += ".globl %s\n.p2align 8\n.type %s,@function\n%s:\n" % (KNAME, KNAME, KNAME)
    s += "\n".join(kernel()) + "\n"
    s += '.section .rodata,"a"\n.p2align 6\n'
    s += """.amdhsa_kernel %s
  .amdhsa_next_free_vgpr 512
  .amdhsa_next_free_sgpr 96
  .amdhsa_accum_offset 256
  .amdhsa_group_segment_fixed_size 0
  .amdhsa_kernarg_size 64
  .amdhsa_user_sgpr_count 2
  .amdhsa_user_sgpr_kernarg_segment_ptr 1
  .amdhsa_system_sgpr_workgroup_id_x 1
.end_amdhsa_kernel
""" % KNAME
    open(OUT, "w").write(s)
main()
```

```python
import sys, struct
from asmlib import *

def opt(name, default=""):
    for a in sys.argv[1:]:
        if a.startswith("--" + name + "="): return a.split("=", 1)[1]
    return default
STAMPS = "--stamps" in sys.argv
POL_W = opt("pw"); POL_X = opt("px"); POL_WO = opt("pwo"); POL_OL = opt("pol", "sc1"); POL_OS = opt("pos", "sc1"); POL_KV = opt("pkv", "nt")
FORCE_SLOW = opt("forceslow") == "1"
def pol(x): return (x.replace("+", " ") + " ") if x else ""
OUT = [a for a in sys.argv[1:] if not a.startswith("--")]
OUT = OUT[0] if OUT else "out.s"
KNAME = "standalone__mha_block_cached__near_ridge_kernel"

aK = 2; aV = 6; vK = 14; vV = 18
aW = 20; aX = 24; vW = 25; vX = 29
vCA = 30
STP = 31
vCV = 0
AONE = 255
vT0 = 22
XB = 32; AR = 64
NM = 32; LS = 48; S_ = 64; P_ = 96; O_ = 128
QA = 0; Q2A = 64; KA_ = 128; VA_ = 160; ONES = 192
aWo = 96; vWo = 100; vB2 = 104; vPOLL = 105; vOUT = 106; vSIG = 107; vSIG2 = 108
OA = 64
ACC = 128
BREG = [64, 96, 0, 32, 128, 160, 192, 224]
sK, sV, sX, sW, sO = 4, 8, 12, 16, 20
sWAVE, sW4K, sKOFF, sVOFF, sWOFF, sXOFF, sCNT, sOOFF = 24, 25, 26, 27, 28, 29, 30, 31
sT = 48
sWK, sXK, sWB = 56, 57, 58
sB, sHP, sEXP = 59, 60, 61
sST = 62
sX1, sX2, sX3 = 66, 67, 68
sMODE = 69
sSG1 = 3
sSTB = 72
sD, sWO, sOUT = 76, 80, 84
sKS, sWOO, sOLO, sM0B, sCOFF, sQT13, sOUTO, sPOFF = 88, 89, 90, 91, 92, 93, 94, 95
sEX = 70
LDS_CNT = 163840 - 256
LDS_BAD = 163840 - 512
SCALE = 0.08838834764831845 * 1.4426950408889634
LIMIT = 2.0 ** 30
def f2u(f): return struct.unpack("<I", struct.pack("<f", f))[0]

class Prog:
    def __init__(self): self.L = []
    def e(self, s): self.L.append("  " + s)
    def lab(self, s): self.L.append(s + ":")
    def ext(self, l): self.L.extend(l)
def ind(l): return ["  " + x if not x.endswith(":") else x for x in l]

def mfma(d, a, b, c): return "v_mfma_f32_16x16x32_bf16 %s, %s, %s, %s" % (d, a, b, c)

def stamp_lines(i):
    if not STAMPS: return []
    return ["  s_memrealtime s[%d:%d]" % (sST, sST + 1), "  s_memtime s[%d:%d]" % (sST + 2, sST + 3), "  s_waitcnt lgkmcnt(0)",
            "  v_writelane_b32 v%d, s%d, %d" % (STP, sST, i), "  v_writelane_b32 v%d, s%d, %d" % (STP, sST + 2, 16 + i)]

def stamp_store(p):
    if not STAMPS: return
    p.e("s_add_u32 s%d, s46, 0x10000000" % sSTB)
    p.e("s_addc_u32 s%d, s47, 0" % (sSTB + 1))
    p.e("s_and_b32 s%d, s%d, 0xffff" % (sSTB + 1, sSTB + 1))
    p.e("s_mov_b32 s%d, 0x100000" % (sSTB + 2))
    p.e("s_mov_b32 s%d, 0x20000" % (sSTB + 3))
    p.e("s_lshl_b32 s%d, s2, 2" % sT)
    p.e("s_add_u32 s%d, s%d, s%d" % (sT, sT, sWAVE))
    p.e("s_lshl_b32 s%d, s%d, 7" % (sT, sT))
    p.e("v_mbcnt_lo_u32_b32 v2, -1, 0"); p.e("v_mbcnt_hi_u32_b32 v2, -1, v2")
    p.e("v_lshlrev_b32 v1, 2, v2")
    p.e("v_cmp_gt_u32 vcc, 32, v2")
    p.e("s_nop 1")
    p.e("s_and_saveexec_b64 s[%d:%d], vcc" % (sEX, sEX + 1))
    p.e("buffer_store_dword v%d, v1, s[%d:%d], s%d offen" % (STP, sSTB, sSTB + 3, sT))
    p.e("s_waitcnt vmcnt(0)")
    p.e("s_mov_b64 exec, s[%d:%d]" % (sEX, sEX + 1))

def srd(p, base, lo, hi, size):
    p.e("s_mov_b32 s%d, s%d" % (base, lo))
    p.e("s_and_b32 s%d, s%d, 0xffff" % (base + 1, hi))
    p.e("s_mov_b32 s%d, 0x%x" % (base + 2, size))
    p.e("s_mov_b32 s%d, 0x20000" % (base + 3))

class Gaps:
    def __init__(self, mf):
        self.mf = mf
        n = len(mf)
        self.pre = [[] for _ in range(n)]
        self.mem = [[] for _ in range(n)]
        self.val = [[] for _ in range(n)]
        self.post = [[] for _ in range(n)]
    def cost(self, g):
        return 4 * len(self.mem[g]) + sum(8 if x.startswith("v_exp") else 4 for x in self.val[g])
    def lines(self):
        L = []
        for g, m in enumerate(self.mf):
            if m is not None: L.append("  " + m)
            for x in self.pre[g] + self.mem[g] + self.val[g] + self.post[g]:
                L.append(x if x.endswith(":") else "  " + x)
        return L

def dma(voff, srdb, soff, j, policy):
    return "buffer_load_dwordx4 v%d, s[%d:%d], s%d offen offset:%d %slds" % (voff, srdb, srdb + 3, soff, j * 1024, pol(policy))
def kv_dma_group(which, slot):
    if which == "K":
        return (["s_add_u32 m0, s%d, 0x%x" % (sW4K, slot * 16384)], [dma(vK + j, sK, sKOFF, j, POL_KV) for j in range(4)],
                ["s_add_u32 s%d, s%d, 0x4000" % (sKOFF, sKOFF)])
    return (["s_add_u32 m0, s%d, 0x%x" % (sW4K, 65536 + slot * 16384)], [dma(vV + (j & 1), sV, sVOFF, j, POL_KV) for j in range(4)],
            ["s_add_u32 s%d, s%d, 0x4000" % (sVOFF, sVOFF)])
def wx_dma_group(which, slot):
    if which == "W":
        return (["s_add_u32 m0, s%d, 0x%x" % (sW4K, slot * 16384)], [dma(vW + j, sW, sWOFF, j, POL_W) for j in range(4)],
                ["s_add_u32 s%d, s%d, 0x40000" % (sWK, sWK), "s_and_b32 s%d, s%d, 0x3fffff" % (sWK, sWK), "s_add_u32 s%d, s%d, s%d" % (sWOFF, sWK, sWB)])
    so = [sXOFF, sX1, sX2, sX3]
    return (["s_add_u32 m0, s%d, 0x%x" % (sW4K, 65536 + slot * 16384)], [dma(vX, sX, so[j], j, POL_X) for j in range(4)],
            ["s_add_u32 s%d, s%d, 64" % (sXK, sXK), "s_and_b32 s%d, s%d, 0x3ff" % (sXK, sXK), "s_add_u32 s%d, s%d, s%d" % (sXOFF, sXK, sWB),
             "s_add_u32 s%d, s%d, 15360" % (sX1, sXOFF), "s_add_u32 s%d, s%d, 30720" % (sX2, sXOFF), "s_add_u32 s%d, s%d, 46080" % (sX3, sXOFF)])
def place_dma_groups(G, groups, gaps):
    k = 0
    for setup, d, post in groups:
        G.pre[gaps[k] - 1].extend(setup)
        for j in range(4): G.mem[gaps[k + j]].append(d[j])
        n = len(post)
        for i, x in enumerate(post): G.pre[min(gaps[k + 3] + 1 + i // 2, len(G.mf) - 1)].append(x)
        k += 4

_uid = [0]
class Sync:
    def __init__(self): self.ool = []
    def arrive(self, vm, alt=None):
        if alt is None:
            return ["s_waitcnt vmcnt(%d) lgkmcnt(0)" % vm], "ds_add_u32 v%d, a%d" % (vCA, AONE)
        _uid[0] += 1
        u = _uid[0]
        self.ool += ["L_alt%d:" % u, "  s_waitcnt vmcnt(%d) lgkmcnt(0)" % alt[1], "  s_branch L_alt%d_ret" % u]
        return ["s_cmp_eq_u32 s%d, %d" % (sCNT, alt[0]), "s_cbranch_scc1 L_alt%d" % u, "s_waitcnt vmcnt(%d) lgkmcnt(0)" % vm, "L_alt%d_ret:" % u], "ds_add_u32 v%d, a%d" % (vCA, AONE)
    def check(self, vcv):
        _uid[0] += 1
        u = _uid[0]
        rd = "ds_read_b32 v%d, v%d" % (vcv, vCA)
        cmp_ = "v_cmp_gt_u32 vcc, s%d, v%d" % (sEXP, vcv)
        br = ["s_cbranch_vccnz L_spin%d" % u, "L_spin%d_ret:" % u, "s_add_u32 s%d, s%d, 4" % (sEXP, sEXP)]
        self.ool += ["L_spin%d:" % u, "  ds_read_b32 v%d, v%d" % (vcv, vCA), "  s_waitcnt lgkmcnt(0)",
                     "  v_cmp_gt_u32 vcc, s%d, v%d" % (sEXP, vcv), "  s_cbranch_vccnz L_spin%d" % u, "  s_branch L_spin%d_ret" % u]
        return rd, cmp_, br
SY = Sync()

def acc_reg(blk, qb):
    if blk < 8: return ar((blk * 4 + qb) * 4, 4)
    return vr(128 + ((blk - 8) * 4 + qb) * 4, 4)

def qproj_period(s_slot, par, groups, vm, sync=True):
    mf = []
    for blk in range(12, 16):
        for qb in range(4):
            mf.append(mfma(acc_reg(blk, qb), vr(AR + blk * 4, 4), vr(XB + (par ^ 1) * 16 + qb * 4, 4), acc_reg(blk, qb)))
    for blk in range(0, 12):
        for qb in range(4):
            mf.append(mfma(acc_reg(blk, qb), vr(AR + blk * 4, 4), vr(XB + par * 16 + qb * 4, 4), acc_reg(blk, qb)))
    G = Gaps(mf)
    so = s_slot * 16384
    for qb in range(4):
        G.mem[qb].append("ds_read_b128 %s, v%d offset:%d" % (vr(XB + par * 16 + qb * 4, 4), aX, so + qb * 1024))
    g = 0
    for blk in range(16):
        h, t, Y = blk // 8, (blk % 8) // 2, blk % 2
        for jj in range(2):
            lo = int((blk * 2 + jj) * 1.3) + 1
            if blk >= 12: lo = max(lo, (blk - 12) * 4 + 4)
            g = lo
            while G.cost(g) >= 4 and g < lo + 1 and G.cost(g) >= 8: g += 1
            G.mem[g].append("ds_read_b64_tr_b16 %s, v%d offset:%d" % (vr(AR + blk * 4 + 2 * jj, 2), aW + t, so + jj * 2048 + h * 256 + 8 * Y))
    if groups:
        cand = [g for g in range(3, 44) if G.cost(g) <= 4]
        n = 4 * len(groups)
        pick = [cand[int((k + 0.5) * len(cand) / n)] for k in range(n)]
        place_dma_groups(G, groups, pick)
    if sync:
        w, add = SY.arrive(vm, None)
        G.pre[47].extend(w); G.mem[47].append(add)
        rd, c, br = SY.check(vCV)
        G.mem[55].append(rd)
        G.pre[61].append("s_waitcnt lgkmcnt(0)"); G.val[61].append(c)
        G.post[62].extend(br)
    return G

def auto_lgkm(lines):
    ins = [Ins(l) for l in lines]
    out = []; pend = []; inserts = {}; lastm = None
    for n, i in enumerate(ins):
        if i.kind == "mfma":
            need = None
            regs = set(i.r) | set(i.c)
            for k, (idx, w) in enumerate(pend):
                if regs & w: need = k
            if need is not None:
                at = lastm + 1 if lastm is not None else n
                assert pend[need][0] < at, "LDS read too late for consumer: %s" % i.text
                cnt = min(15, sum(1 for (idx, w) in pend[need + 1:] if idx < at))
                inserts.setdefault(at, []).append(cnt)
                pend = pend[need + 1:]
            lastm = n
        if i.kind in ("dsr", "dsw"): pend.append((n, set(i.w)))
        if i.kind == "wait" and i.lg is not None:
            pend = pend[len(pend) - i.lg:] if i.lg > 0 else []
    for n, l in enumerate(lines):
        if n in inserts: out.append("  s_waitcnt lgkmcnt(%d)" % min(inserts[n]))
        out.append(l)
    return out

def first_unit_valu(upar):
    per = []
    for qb in range(4):
        A = S_ + (qb * 2) * 4; Bq = A + 4
        m = vT0 + 2 * (qb % 2); m2 = m + 1
        L = ["v_max3_f32 v%d, v%d, v%d, v%d" % (m, A, A + 1, A + 2),
             "v_max3_f32 v%d, v%d, v%d, v%d" % (m, m, A + 3, Bq),
             "v_max3_f32 v%d, v%d, v%d, v%d" % (m, m, Bq + 1, Bq + 2),
             "v_max_f32 v%d, v%d, v%d" % (m, m, Bq + 3),
             "v_mov_b32 v%d, v%d" % (m2, m),
             "v_permlane16_swap_b32 v%d, v%d" % (m, m2),
             "v_max_f32 v%d, v%d, v%d" % (m, m, m2),
             "v_mov_b32 v%d, v%d" % (m2, m),
             "v_permlane32_swap_b32 v%d, v%d" % (m, m2),
             "v_max_f32 v%d, v%d, v%d" % (m, m, m2)]
        for r in range(4): L.append("v_sub_f32 v%d, 0, v%d" % (NM + qb * 4 + r, m))
        for r in range(8): L.append("v_sub_f32 v%d, v%d, v%d" % (A + r, A + r, m))
        for r in range(8): L.append("v_exp_f32 v%d, v%d" % (A + r, A + r))
        for kb in range(2):
            for hh in range(2):
                L.append("v_cvt_pk_bf16_f32 v%d, v%d, v%d" % (P_ + (upar ^ 1) * 16 + qb * 4 + kb * 2 + hh, A + kb * 4 + hh * 2, A + kb * 4 + hh * 2 + 1))
        per.append(L)
    return per

def att_period(upar, kslot, khalf, vslot, vhalf, groups, do_qk=True, do_pv=True, do_vread=True, do_kread=True, czero=False,
               first=False, sync=None, extra_mem=None, extra_lo=0, alt=None):
    mf = []
    for qb in range(4):
        for kb in range(2):
            b = qb * 2 + kb
            for t in range(4):
                c = ("0" if first else vr(NM + qb * 4, 4)) if t == 0 else vr(S_ + b * 4, 4)
                mf.append(mfma(vr(S_ + b * 4, 4), ar(KA_ + (kb * 4 + t) * 4, 4), ar(QA + (t * 4 + qb) * 4, 4), c) if do_qk else None)
    for qb in range(4):
        pf = vr(P_ + upar * 16 + qb * 4, 4)
        for db in range(8):
            o = vr(O_ + (db * 4 + qb) * 4, 4)
            mf.append(mfma(o, ar(VA_ + db * 4, 4), pf, "0" if czero else o) if do_pv else None)
        l = vr(LS + qb * 4, 4)
        mf.append(mfma(l, ar(ONES, 4), pf, "0" if czero else l) if do_pv else None)
    G = Gaps(mf)
    n = len(mf)
    expg = []
    if do_qk and not first:
        expg = [8 + int(round(e * 57 / 31.0)) for e in range(32)]
        for e, g in enumerate(expg):
            b, r = e // 4, e % 4
            G.val[g].append("v_exp_f32 v%d, v%d" % (S_ + b * 4 + r, S_ + b * 4 + r))
    es = set(expg)
    ne = [g for g in range(n) if g not in es]
    if do_vread:
        vg = [g for g in ne if g < 28]
        reads = []
        for db in range(8):
            for jj in range(2):
                reads.append("ds_read_b64_tr_b16 %s, v%d offset:%d" % (ar(VA_ + db * 4 + 2 * jj, 2), aV + db, vslot * 16384 + (vhalf * 32 + 16 * jj) * 256))
        for rd, g in zip(reads, vg[:16]): G.mem[g].append(rd)
    if groups:
        assert len(groups) == 1
        place_dma_groups(G, groups, [1, 3, 5, 7])
    if do_kread:
        kg = [g for g in ne if g >= 33 and g <= 51]
        reads = []
        for kb in range(2):
            for t in range(4):
                reads.append("ds_read_b128 %s, v%d offset:%d" % (ar(KA_ + (kb * 4 + t) * 4, 4), aK + t, kslot * 16384 + (khalf * 2 + kb) * 4096))
        assert len(kg) >= 8, kg
        for rd, g in zip(reads, kg[:8]): G.mem[g].append(rd)
    if sync is not None:
        w, add = SY.arrive(sync, alt)
        G.pre[53].extend(w); G.mem[53].append(add)
        rd, c, br = SY.check(vCV)
        G.mem[60].append(rd)
        G.pre[66].append("s_waitcnt lgkmcnt(0)"); G.val[66].append(c)
        G.post[67].extend(br)
    if do_qk and not first:
        for b in range(8):
            qb, kb = b // 2, b % 2
            for hh in range(2):
                ge = expg[b * 4 + hh * 2 + 1]
                g = [g for g in ne if g > ge and G.cost(g) <= 4][0]
                G.val[g].append("v_cvt_pk_bf16_f32 v%d, v%d, v%d" % (P_ + (upar ^ 1) * 16 + qb * 4 + kb * 2 + hh, S_ + b * 4 + hh * 2, S_ + b * 4 + hh * 2 + 1))
    if do_qk and first:
        per = first_unit_valu(upar)
        g = 0
        for qb in range(4):
            g = max(g, 8 * qb + 7 + 4)
            for x in per[qb]:
                while G.cost(g) >= 8 and g < n - 1: g += 1
                G.val[g].append(x)
    if extra_mem:
        cand = [g for g in range(max(1, extra_lo), n - 2) if G.cost(g) <= 4]
        cand2 = [g for g in range(max(1, extra_lo), n - 2) if G.cost(g) == 0]
        slots = sorted(cand + cand2)
        assert len(slots) >= len(extra_mem), (len(slots), len(extra_mem))
        step = len(slots) / float(len(extra_mem))
        for k, (pre, op, post) in enumerate(extra_mem):
            g = slots[int(k * step)]
            G.pre[g - 1].extend(pre) if pre and g - 1 >= 0 else None
            G.mem[g].append(op)
            G.post[g].extend(post)
    if do_pv: G.pre[31].append("s_waitcnt lgkmcnt(0)")
    return G

def epi_valu():
    R = S_
    ep = ["s_nop 7"]
    ep.append("v_mov_b32 v%d, 0x%x" % (R + 9, f2u(LIMIT)))
    for qb in range(4): ep.append("v_rcp_f32 v%d, v%d" % (R + 2 * qb, LS + qb * 4))
    ep.append("v_cmp_nle_f32 s[%d:%d], v%d, v%d" % (sT, sT + 1, LS, R + 9))
    ep.append("v_cmp_nle_f32 s[%d:%d], v%d, v%d" % (sT + 2, sT + 3, LS + 4, R + 9))
    ep.append("v_cmp_nle_f32 s[%d:%d], v%d, v%d" % (sT + 4, sT + 5, LS + 8, R + 9))
    ep.append("v_cmp_nle_f32 vcc, v%d, v%d" % (LS + 12, R + 9))
    for qb in range(4): ep.append("v_mov_b32 v%d, v%d" % (R + 2 * qb + 1, R + 2 * qb))
    ep.append("s_or_b64 s[%d:%d], s[%d:%d], s[%d:%d]" % (sT, sT + 1, sT, sT + 1, sT + 2, sT + 3))
    ep.append("s_or_b64 vcc, vcc, s[%d:%d]" % (sT + 4, sT + 5))
    ep.append("s_or_b64 vcc, vcc, s[%d:%d]" % (sT, sT + 1))
    if FORCE_SLOW: ep.append("s_mov_b64 vcc, -1")
    for t in range(4):
        for qb in range(4):
            X = O_ + ((2 * t) * 4 + qb) * 4; Y = O_ + ((2 * t + 1) * 4 + qb) * 4
            for base in (X, X + 2, Y, Y + 2):
                ep.append("v_pk_mul_f32 v[%d:%d], v[%d:%d], v[%d:%d]" % (base, base + 1, base, base + 1, R + 2 * qb, R + 2 * qb + 1))
        for qb in range(4):
            X = O_ + ((2 * t) * 4 + qb) * 4; Y = O_ + ((2 * t + 1) * 4 + qb) * 4
            ep.append("v_cvt_pk_bf16_f32 v%d, v%d, v%d" % (X, X, X + 1))
            ep.append("v_cvt_pk_bf16_f32 v%d, v%d, v%d" % (X + 1, X + 2, X + 3))
            ep.append("v_cvt_pk_bf16_f32 v%d, v%d, v%d" % (X + 2, Y, Y + 1))
            ep.append("v_cvt_pk_bf16_f32 v%d, v%d, v%d" % (X + 3, Y + 2, Y + 3))
    return ep
def epi_bad(label):
    return ["s_cbranch_vccz %s" % label,
            "v_add_u32 v%d, %d, v%d" % (S_ + 10, LDS_BAD - LDS_CNT, vCA), "v_mov_b32 v%d, 1" % (S_ + 11),
            "ds_write_b32 v%d, v%d" % (S_ + 10, S_ + 11), "s_waitcnt lgkmcnt(0)",
            label + ":"]
def epi_stores(qmajor=False):
    L = []
    if not qmajor:
        for t in range(4):
            for qb in range(4):
                X = O_ + ((2 * t) * 4 + qb) * 4
                post = ["s_add_u32 s%d, s%d, 0x4000" % (sOOFF, sOOFF)] if qb == 3 else []
                L.append(([], "buffer_store_dwordx4 v[%d:%d], v1, s[%d:%d], s%d offen offset:%d %s" % (X, X + 3, sO, sO + 3, sOOFF, qb * 1024, pol(POL_OS)), post))
        return L
    so = [sOOFF, sT + 4, sT + 5, sT + 6]
    for qb in range(4):
        for t in range(4):
            X = O_ + ((2 * t) * 4 + qb) * 4
            pre = ["s_add_u32 s%d, s%d, 0x%x" % (so[k], sOOFF, k * 0x4000) for k in (1, 2, 3)] if (qb == 0 and t == 0) else []
            post = ["s_add_u32 s%d, s%d, 0x10000" % (sOOFF, sOOFF)] if (qb == 3 and t == 3) else []
            L.append((pre, "buffer_store_dwordx4 v[%d:%d], v1, s[%d:%d], s%d offen offset:%d %s" % (X, X + 3, sO, sO + 3, so[t], qb * 1024, pol(POL_OS)), post))
    return L

def signal(label, val, va, vb):
    return ["  s_cmp_lg_u32 s%d, 0" % sWAVE, "  s_cbranch_scc1 %s" % label,
            "  s_mov_b64 exec, 1",
            "  v_mov_b32 v%d, 0x%x" % (va, val), "  v_mov_b32 v%d, s%d" % (vb, sPOFF),
            "  buffer_atomic_add v%d, v%d, s[%d:%d], 0 offen sc1" % (va, vb, sD, sD + 3),
            "  s_mov_b64 exec, -1", label + ":"]

def poll_check(label, shift, vp):
    return ["  v_readfirstlane_b32 s%d, v%d" % (sT, vp),
            "  s_bfe_u32 s%d, s%d, 0x%x" % (sT, sT, (8 << 16) | shift),
            "  s_cmp_eq_u32 s%d, 4" % sT,
            "  s_cbranch_scc1 %s_ok" % label,
            "%s_spin:" % label,
            "  s_sleep 8",
            "  buffer_load_dword v%d, off, s[%d:%d], s%d sc1" % (vp, sD, sD + 3, sCOFF),
            "  s_waitcnt vmcnt(0)",
            "  v_readfirstlane_b32 s%d, v%d" % (sT, vp),
            "  s_bfe_u32 s%d, s%d, 0x%x" % (sT, sT, (8 << 16) | shift),
            "  s_cmp_eq_u32 s%d, 4" % sT,
            "  s_cbranch_scc0 %s_spin" % label,
            "%s_ok:" % label]

def op_advance(delta):
    L = []
    if isinstance(delta, int): L.append("s_add_u32 s%d, s%d, %d" % (sKS, sKS, delta))
    else:
        L.append("s_cmp_eq_u32 s%d, %d" % (sCNT, delta[1]))
        L.append("s_cselect_b32 s%d, -23, 5" % sT)
        L.append("s_add_u32 s%d, s%d, s%d" % (sKS, sKS, sT))
    L.append("s_lshl_b32 s%d, s%d, 15" % (sWOO, sKS))
    L.append("s_lshl_b32 s%d, s%d, 14" % (sOLO, sKS))
    L.append("s_add_u32 s%d, s%d, s%d" % (sOLO, sOLO, sQT13))
    return L
def op_issue(slot, delta):
    ops = []
    for qb in range(8):
        ops.append(([], "buffer_load_dwordx4 %s, v%d, s[%d:%d], s%d offen offset:%d %s" % (ar(BREG[slot] + qb * 4, 4), 1 if qb < 4 else vB2, sO, sO + 3, sOLO, (qb % 4) * 1024, pol(POL_OL)), []))
    for m in range(4):
        pre = ["s_add_u32 m0, s%d, 0x%x" % (sM0B, slot * 4096)] if m == 0 else []
        ops.append((pre, "buffer_load_dwordx4 v%d, s[%d:%d], s%d offen offset:%d %slds" % (vWo + m, sWO, sWO + 3, sWOO, m * 1024, pol(POL_WO)),
                    op_advance(delta) if m == 3 else []))
    return ops
def op_areads(slot, par):
    R = []
    for nb in range(4):
        for jj in range(2):
            R.append("ds_read_b64_tr_b16 %s, v%d offset:%d" % (vr(OA + par * 16 + nb * 4 + 2 * jj, 2), aWo + nb, slot * 4096 + jj * 2048))
    return R
def op_step(c, vm, issue, delta, last=False, poll=False, czero=False):
    mf = []
    for nb in range(4):
        for qb in range(8):
            acc = vr(ACC + (nb * 8 + qb) * 4, 4)
            mf.append(mfma(acc, vr(OA + (c % 2) * 16 + nb * 4, 4), ar(BREG[c] + qb * 4, 4), "0" if czero else acc))
    G = Gaps(mf)
    if not last:
        for k, x in enumerate(op_areads((c + 1) % 8, (c + 1) % 2)): G.mem[1 + 3 * k].append(x)
    if issue:
        ops = op_issue((c + 5) % 8, delta)
        free = [g for g in range(1, 30) if not G.mem[g]]
        sel = [free[int(k * len(free) / 12)] for k in range(12)]
        for (pre, op, post), g in zip(ops, sel):
            G.pre[g - 1].extend(pre); G.mem[g].append(op); G.pre[g + 1].extend(post)
    if poll:
        G.mem[30].append("buffer_load_dword v%d, off, s[%d:%d], s%d sc1" % (vPOLL, sD, sD + 3, sCOFF))
    return ["  s_waitcnt vmcnt(%d)" % vm] + G.lines() + ["  s_waitcnt lgkmcnt(0)"]

def strip_ctl(lines):
    return [l for l in lines if not (l.strip().startswith("s_cbranch") or l.strip().endswith(":"))]


def lane_vals(p, base):
    vL, vL16, vG, vR, vC4 = base, base + 1, base + 2, base + 3, base + 4
    L = ["v_mbcnt_lo_u32_b32 v%d, -1, 0" % vL, "v_mbcnt_hi_u32_b32 v%d, -1, v%d" % (vL, vL),
         "v_and_b32 v%d, 15, v%d" % (vL16, vL), "v_lshrrev_b32 v%d, 4, v%d" % (vG, vL),
         "v_lshrrev_b32 v%d, 2, v%d" % (vR, vL16), "v_and_b32 v%d, 3, v%d" % (vC4, vL)]
    return L

def oproj_addr(tb):
    vL, vL16, vG, vR, vC4, t1, t2, t3 = [tb + i for i in range(8)]
    L = lane_vals(None, tb)
    L += ["v_lshl_add_u32 v%d, v%d, 2, v%d" % (t2, vG, vR),
          "v_lshrrev_b32 v%d, 1, v%d" % (t3, t2), "v_and_b32 v%d, 3, v%d" % (t3, t3),
          "v_lshlrev_b32 v%d, 7, v%d" % (t2, t2), "v_lshl_add_u32 v%d, v%d, 3, v%d" % (t2, vC4, t2), "v_add_u32 v%d, s%d, v%d" % (t2, sM0B, t2)]
    for nb in range(4):
        L += ["v_xor_b32 v%d, %d, v%d" % (t1, nb, t3), "v_lshl_add_u32 v%d, v%d, 5, v%d" % (aWo + nb, t1, t2)]
    L += ["v_lshlrev_b32 v%d, 1, v%d" % (t1, vG), "v_and_b32 v%d, 7, v%d" % (t2, vL), "v_xor_b32 v%d, v%d, v%d" % (t1, t1, t2), "v_lshlrev_b32 v%d, 4, v%d" % (t1, t1),
          "v_lshrrev_b32 v%d, 3, v%d" % (t2, vL), "v_lshl_add_u32 v%d, v%d, 10, v%d" % (t1, t2, t1)]
    for m in range(4): L.append("v_add_u32 v%d, %d, v%d" % (vWo + m, m * 7168, t1))
    L += ["v_add_u32 v%d, 0x1000, v1" % vB2, "v_lshlrev_b32 v%d, 10, v%d" % (vOUT, vL16), "v_lshl_add_u32 v%d, v%d, 3, v%d" % (vOUT, vG, vOUT),
          "s_lshl_b32 s%d, s%d, 5" % (sKS, sWAVE)] + op_advance(0)
    return L

def slow_attention(p):
    e = p.e
    M_ = NM
    p.lab("L_slow")
    e("s_mov_b32 s%d, 0" % (sT + 6))
    p.lab("L_slow_head")
    for qb in range(4): e("v_mov_b32 v%d, 0xff800000" % (M_ + 4 * qb))
    for r in range(128): e("v_mov_b32 v%d, 0" % (O_ + r))
    for r in range(16): e("v_mov_b32 v%d, 0" % (LS + r))
    e("s_lshl_b32 s%d, s%d, 18" % (sKOFF, sT + 6)); e("s_add_u32 s%d, s%d, s%d" % (sKOFF, sKOFF, sW4K)); e("s_mov_b32 s%d, s%d" % (sVOFF, sKOFF))
    e("s_mov_b32 s%d, 0" % sCNT)
    p.lab("L_slow_tile")
    e("s_waitcnt vmcnt(0) lgkmcnt(0)"); e("s_barrier")
    for which in ("K", "V"):
        setup, d, post = kv_dma_group(which, 0)
        for x in setup: e(x)
        e("s_nop 0")
        for x in d: e(x)
        for x in post: e(x)
    e("s_waitcnt vmcnt(0)"); e("s_barrier")
    body = []
    for half in range(2):
        for kb in range(2):
            for t in range(4): body.append("ds_read_b128 %s, v%d offset:%d" % (ar(KA_ + (kb * 4 + t) * 4, 4), aK + t, (half * 2 + kb) * 4096))
        for db in range(8):
            for jj in range(2): body.append("ds_read_b64_tr_b16 %s, v%d offset:%d" % (ar(VA_ + db * 4 + 2 * jj, 2), aV + db, (half * 32 + 16 * jj) * 256))
        body.append("s_waitcnt lgkmcnt(0)")
        for qb in range(4):
            for kb in range(2):
                b = qb * 2 + kb
                for t in range(4):
                    body.append(mfma(vr(S_ + b * 4, 4), ar(KA_ + (kb * 4 + t) * 4, 4), ar(QA + (t * 4 + qb) * 4, 4), "0" if t == 0 else vr(S_ + b * 4, 4)))
        for qb in range(4):
            A = S_ + qb * 8; m = vT0; m2 = vT0 + 1; al = vT0 + 2; mo = M_ + 4 * qb
            body += ["v_max3_f32 v%d, v%d, v%d, v%d" % (m, A, A + 1, A + 2), "v_max3_f32 v%d, v%d, v%d, v%d" % (m, m, A + 3, A + 4),
                     "v_max3_f32 v%d, v%d, v%d, v%d" % (m, m, A + 5, A + 6), "v_max3_f32 v%d, v%d, v%d, v%d" % (m, m, A + 7, mo),
                     "v_mov_b32 v%d, v%d" % (m2, m), "v_permlane16_swap_b32 v%d, v%d" % (m, m2), "v_max_f32 v%d, v%d, v%d" % (m, m, m2),
                     "v_mov_b32 v%d, v%d" % (m2, m), "v_permlane32_swap_b32 v%d, v%d" % (m, m2), "v_max_f32 v%d, v%d, v%d" % (m, m, m2),
                     "v_sub_f32 v%d, v%d, v%d" % (al, mo, m), "v_exp_f32 v%d, v%d" % (al, al), "v_mov_b32 v%d, v%d" % (mo, m)]
            for r in range(8): body.append("v_sub_f32 v%d, v%d, v%d" % (A + r, A + r, m))
            for r in range(8): body.append("v_exp_f32 v%d, v%d" % (A + r, A + r))
            for k in range(4): body.append("v_cvt_pk_bf16_f32 v%d, v%d, v%d" % (P_ + qb * 4 + k, A + 2 * k, A + 2 * k + 1))
            for db in range(8):
                for r in range(4):
                    o = O_ + (db * 4 + qb) * 4 + r
                    body.append("v_mul_f32 v%d, v%d, v%d" % (o, o, al))
            for r in range(4): body.append("v_mul_f32 v%d, v%d, v%d" % (LS + qb * 4 + r, LS + qb * 4 + r, al))
        for qb in range(4):
            pf = vr(P_ + qb * 4, 4)
            for db in range(8):
                o = vr(O_ + (db * 4 + qb) * 4, 4)
                body.append(mfma(o, ar(VA_ + db * 4, 4), pf, o))
            body.append(mfma(vr(LS + qb * 4, 4), ar(ONES, 4), pf, vr(LS + qb * 4, 4)))
        body.append("s_nop 7"); body.append("s_nop 1")
    bl, errs = autofix([], ind(body), "slow")
    bl2, errs2 = autofix(bl, list(bl), "slow2")
    p.ext(bl2)
    e("s_add_u32 s%d, s%d, 1" % (sCNT, sCNT)); e("s_cmp_lt_u32 s%d, 16" % sCNT); e("s_cbranch_scc1 L_slow_tile")
    ep = [x for x in epi_valu() if not x.startswith(("v_cmp_nle", "s_or_b64", "s_mov_b64 vcc"))]
    el, e3 = autofix(bl2[-30:], ind(ep), "slowep")
    p.ext(el)
    for pre, op, post in epi_stores():
        e(op)
        for x in post: e(x)
    e("s_add_u32 s%d, s%d, 1" % (sT + 6, sT + 6)); e("s_cmp_lt_u32 s%d, 2" % (sT + 6))
    e("s_cbranch_scc0 L_slow_done")
    e("s_nop 4")
    for r in range(64): e("v_accvgpr_mov_b32 a%d, a%d" % (QA + r, Q2A + r))
    e("s_branch L_slow_head")
    p.lab("L_slow_done")
    e("s_waitcnt vmcnt(0) lgkmcnt(0)"); e("s_barrier")
    e("s_sub_u32 s%d, 0x10001, s%d" % (sT + 7, sSG1))
    sg = signal("L_sig_slow", 0, S_ + 12, S_ + 13)
    sg = [x.replace("v_mov_b32 v%d, 0x0" % (S_ + 12), "v_mov_b32 v%d, s%d" % (S_ + 12, sT + 7)) for x in sg]
    p.ext(sg)
    return errs + errs2 + e3

def kernel():
    p = Prog(); errs = []
    p.e("s_cmp_ge_u32 s2, 256")
    p.e("s_cbranch_scc1 L_end")
    p.e("v_lshrrev_b32 v2, 6, v0")
    p.e("s_mov_b32 s%d, 0" % sMODE)
    p.e("s_mov_b32 s%d, 0" % sSG1)
    p.e("v_readfirstlane_b32 s%d, v2" % sWAVE)
    if STAMPS: p.e("v_mov_b32 v%d, 0" % STP)
    p.lab("L_restart")
    p.e("s_load_dwordx16 s[32:47], s[0:1], 0")
    vL, vL16, vG, vR, vC4, vt1, vt2, vt3 = 132, 133, 134, 135, 136, 137, 138, 139
    p.ext(ind(lane_vals(p, 132)))
    p.e("v_lshlrev_b32 v1, 4, v%d" % vL)
    p.e("s_and_b32 s%d, s2, 7" % sT)
    p.e("s_lshr_b32 s%d, s2, 3" % (sT + 1))
    p.e("s_lshl_b32 s%d, s%d, 1" % (sT, sT))
    p.e("s_lshr_b32 s%d, s%d, 4" % (sT + 2, sT + 1))
    p.e("s_add_u32 s%d, s%d, s%d" % (sB, sT, sT + 2))
    p.e("s_and_b32 s%d, s%d, 15" % (sHP, sT + 1))
    p.e("s_lshl_b32 s%d, s%d, 12" % (sW4K, sWAVE))
    p.e("v_lshrrev_b32 v%d, 5, v%d" % (vt2, vL))
    p.e("v_and_b32 v%d, 31, v%d" % (vt3, vL))
    for j in range(4):
        p.e("v_add_u32 v%d, %d, v%d" % (vt1, 2 * (j & 1), vt2))
        p.e("v_lshlrev_b32 v%d, 2, v%d" % (vt1, vt1))
        p.e("v_xor_b32 v%d, v%d, v%d" % (vt1, vt1, vt3))
        p.e("v_lshlrev_b32 v%d, 4, v%d" % (vt1, vt1))
        p.e("v_lshl_add_u32 v%d, v%d, 13, v%d" % (vt1, vt2, vt1))
        p.e("v_add_u32 v%d, %d, v%d" % (vW + j, j * 15360, vt1))
    p.e("v_lshrrev_b32 v%d, 3, v%d" % (vt1, vL))
    p.e("v_and_b32 v%d, 2, v%d" % (vt1, vt1))
    p.e("v_xor_b32 v%d, v%d, v%d" % (vt1, vt1, vC4))
    p.e("v_lshlrev_b32 v%d, 4, v%d" % (vt1, vt1))
    p.e("v_lshrrev_b32 v%d, 2, v%d" % (vt2, vL))
    p.e("v_lshl_add_u32 v%d, v%d, 10, v%d" % (vX, vt2, vt1))
    p.e("s_lshl_b32 s%d, s%d, 16" % (sWB, sWAVE))
    p.e("s_lshl_b32 s%d, s%d, 18" % (sWK, sHP))
    p.e("s_lshl_b32 s%d, s%d, 6" % (sXK, sHP))
    p.e("s_add_u32 s%d, s%d, s%d" % (sWOFF, sWK, sWB))
    p.e("s_add_u32 s%d, s%d, s%d" % (sXOFF, sXK, sWB))
    p.e("s_add_u32 s%d, s%d, 15360" % (sX1, sXOFF)); p.e("s_add_u32 s%d, s%d, 30720" % (sX2, sXOFF)); p.e("s_add_u32 s%d, s%d, 46080" % (sX3, sXOFF))
    p.e("s_waitcnt lgkmcnt(0)")
    p.e("s_lshl_b32 s%d, s%d, 18" % (sT + 3, sB))
    p.e("s_add_u32 s32, s32, s%d" % (sT + 3)); p.e("s_addc_u32 s33, s33, 0")
    srd(p, sX, 32, 33, 0x40000)
    p.e("s_lshl_b32 s%d, s%d, 9" % (sT + 3, sHP))
    p.e("s_add_u32 s38, s38, s%d" % (sT + 3)); p.e("s_addc_u32 s39, s39, 0")
    srd(p, sW, 38, 39, 0x400000)
    p.e("s_sub_u32 s%d, s%d, s%d" % (sW + 2, sW + 2, sT + 3))
    p.ext(stamp_lines(0))
    p.e("s_and_b32 s%d, s%d, 7" % (sT + 3, sHP))
    p.e("s_lshl_b32 s%d, s%d, 7" % (sT + 3, sT + 3))
    p.e("s_add_u32 s40, s40, s%d" % (sT + 3)); p.e("s_addc_u32 s41, s41, 0")
    srd(p, sWO, 40, 41, 0x400000)
    p.e("s_sub_u32 s%d, s%d, s%d" % (sWO + 2, sWO + 2, sT + 3))
    def warm():
        p.e("s_lshl_b32 s%d, s2, 2" % sT); p.e("s_add_u32 s%d, s%d, s%d" % (sT, sT, sWAVE)); p.e("s_lshl_b32 s%d, s%d, 12" % (sT, sT))
        p.e("s_lshl_b32 s%d, s%d, 10" % (sT + 1, sWAVE))
        p.e("s_add_u32 m0, s%d, 0x20000" % (sT + 1))
        p.e("s_nop 0")
        for j in range(4):
            p.e("buffer_load_dwordx4 v1, s[%d:%d], s%d offen lds" % (sWO, sWO + 3, sT))
            p.e("s_add_u32 s%d, s%d, 0x400" % (sT, sT))
    WPOS = opt("wpos", "0")
    if WPOS == "0": warm()
    for s in range(3):
        for which in ("W", "X"):
            setup, d, post = wx_dma_group(which, s)
            for x in setup: p.e(x)
            p.e("s_nop 0")
            for x in d: p.e(x)
            for x in post: p.e(x)
    if WPOS == "1": warm()
    for t in range(4):
        p.e("v_add_u32 v%d, %d, v%d" % (vt1, 4 * t, vG))
        p.e("v_xor_b32 v%d, v%d, v%d" % (vt1, vt1, vL16))
        p.e("v_lshlrev_b32 v%d, 4, v%d" % (vt1, vt1))
        p.e("v_lshl_add_u32 v%d, v%d, 8, v%d" % (aK + t, vL16, vt1))
        p.e("v_lshl_add_u32 v%d, v%d, 8, v%d" % (vK + t, vG, vt1))
    p.e("v_and_b32 v%d, 1, v%d" % (vt2, vG))
    p.e("v_lshl_add_u32 v%d, v%d, 2, v%d" % (vt2, vt2, vR))
    p.e("v_lshl_add_u32 v%d, v%d, 2, v%d" % (vt3, vG, vR))
    p.e("v_lshlrev_b32 v%d, 8, v%d" % (vt3, vt3))
    p.e("v_lshl_add_u32 v%d, v%d, 3, v%d" % (vt3, vC4, vt3))
    p.e("v_add_u32 v%d, 0x10000, v%d" % (vt3, vt3))
    for db in range(8):
        p.e("v_xor_b32 v%d, %d, v%d" % (vt1, db, vt2))
        p.e("v_lshl_add_u32 v%d, v%d, 5, v%d" % (aV + db, vt1, vt3))
    for j in range(2):
        p.e("v_add_u32 v%d, %d, v%d" % (vt1, 4 * j, vG))
        p.e("v_lshlrev_b32 v%d, 1, v%d" % (vt1, vt1))
        p.e("v_xor_b32 v%d, v%d, v%d" % (vt1, vt1, vL16))
        p.e("v_lshlrev_b32 v%d, 4, v%d" % (vt1, vt1))
        p.e("v_lshl_add_u32 v%d, v%d, 8, v%d" % (vV + j, vG, vt1))
    p.e("v_lshl_add_u32 v%d, v%d, 3, v%d" % (vt3, vG, vR))
    p.e("v_lshlrev_b32 v%d, 9, v%d" % (vt3, vt3))
    p.e("v_lshl_add_u32 v%d, v%d, 4, v%d" % (vt3, vC4, vt3))
    for t in range(4):
        p.e("v_xor_b32 v%d, %d, v%d" % (vt1, t, vR))
        p.e("v_lshl_add_u32 v%d, v%d, 6, v%d" % (aW + t, vt1, vt3))
    p.e("v_lshrrev_b32 v%d, 1, v%d" % (vt1, vL16))
    p.e("v_and_b32 v%d, 2, v%d" % (vt1, vt1))
    p.e("v_xor_b32 v%d, v%d, v%d" % (vt1, vt1, vG))
    p.e("v_lshlrev_b32 v%d, 4, v%d" % (vt1, vt1))
    p.e("v_lshl_add_u32 v%d, v%d, 6, v%d" % (vt1, vL16, vt1))
    p.e("v_add_u32 v%d, 0x10000, v%d" % (vt1, vt1))
    p.e("v_add_u32 v%d, s%d, v%d" % (aX, sW4K, vt1))
    p.e("v_lshlrev_b32 v%d, 2, v%d" % (vCA, vL))
    p.e("v_add_u32 v%d, 0x%x, v%d" % (vCA, LDS_CNT, vCA))
    p.e("v_mov_b32 v%d, 0" % vt1)
    p.e("v_add_u32 v%d, %d, v%d" % (vt2, (LDS_BAD - LDS_CNT) & 0xffffffff, vCA))
    p.e("v_mov_b32 v%d, 1" % vt3)
    p.e("v_accvgpr_write_b32 a%d, v%d" % (AONE, vt3))
    p.e("s_cmp_lg_u32 s%d, 0" % sWAVE)
    p.e("s_cbranch_scc1 L_nozero")
    p.e("ds_write_b32 v%d, v%d" % (vCA, vt1))
    p.e("ds_write_b32 v%d, v%d" % (vt2, vt1))
    p.lab("L_nozero")
    p.e("s_mov_b32 s%d, 4" % sEXP)
    p.e("s_lshl_b32 s%d, s%d, 4" % (sT + 2, sB))
    p.e("s_add_u32 s%d, s%d, s%d" % (sT + 2, sT + 2, sHP))
    p.e("s_lshl_b32 s%d, s%d, 19" % (sT + 3, sT + 2))
    p.e("s_add_u32 s34, s34, s%d" % (sT + 3)); p.e("s_addc_u32 s35, s35, 0")
    p.e("s_add_u32 s36, s36, s%d" % (sT + 3)); p.e("s_addc_u32 s37, s37, 0")
    srd(p, sK, 34, 35, 0x80000)
    srd(p, sV, 36, 37, 0x80000)
    p.e("s_lshl_b32 s%d, s%d, 21" % (sT + 3, sB))
    p.e("s_add_u32 s%d, s46, s%d" % (sT + 4, sT + 3)); p.e("s_addc_u32 s%d, s47, 0" % (sT + 5))
    srd(p, sO, sT + 4, sT + 5, 0x200000)
    srd(p, sD, 44, 45, 256)
    srd(p, sOUT, 42, 43, 0x400000)
    p.e("s_and_b32 s%d, s%d, 7" % (sT + 3, sHP))
    p.e("s_lshl_b32 s%d, s%d, 7" % (sT + 3, sT + 3))
    p.e("s_lshr_b32 s%d, s%d, 3" % (sT + 4, sHP))
    p.e("s_lshl_b32 s%d, s%d, 13" % (sQT13, sT + 4))
    p.e("s_lshl_b32 s%d, s%d, 18" % (sOUTO, sB))
    p.e("s_lshl_b32 s%d, s%d, 17" % (sT + 5, sT + 4)); p.e("s_add_u32 s%d, s%d, s%d" % (sOUTO, sOUTO, sT + 5))
    p.e("s_lshl_b32 s%d, s%d, 15" % (sT + 5, sWAVE)); p.e("s_add_u32 s%d, s%d, s%d" % (sOUTO, sOUTO, sT + 5))
    p.e("s_add_u32 s%d, s%d, s%d" % (sOUTO, sOUTO, sT + 3))
    p.e("s_lshl_b32 s%d, s%d, 2" % (sCOFF, sB)); p.e("s_add_u32 s%d, s%d, s%d" % (sCOFF, sCOFF, sWAVE)); p.e("s_lshl_b32 s%d, s%d, 2" % (sCOFF, sCOFF))
    p.e("s_lshr_b32 s%d, s%d, 2" % (sT, sHP)); p.e("s_lshl_b32 s%d, s%d, 2" % (sT + 1, sB)); p.e("s_add_u32 s%d, s%d, s%d" % (sPOFF, sT, sT + 1)); p.e("s_lshl_b32 s%d, s%d, 2" % (sPOFF, sPOFF))
    p.e("s_lshl_b32 s%d, s%d, 15" % (sM0B, sWAVE))
    p.e("s_cmp_eq_u32 s%d, 3" % sWAVE); p.e("s_cselect_b32 s%d, 0x20000, s%d" % (sM0B, sM0B))
    p.e("s_mov_b32 s%d, s%d" % (sKOFF, sW4K))
    p.e("s_mov_b32 s%d, s%d" % (sVOFF, sW4K))
    p.e("s_lshl_b32 s%d, s%d, 17" % (sOOFF, sHP))
    p.e("s_add_u32 s%d, s%d, s%d" % (sOOFF, sOOFF, sW4K))
    for r in range(128): p.e("v_accvgpr_write_b32 a%d, 0" % r)
    for r in range(128, 256): p.e("v_mov_b32 v%d, 0" % r)
    for r in range(AR + 48, AR + 64): p.e("v_mov_b32 v%d, 0" % r)
    for r in range(XB + 16, XB + 32): p.e("v_mov_b32 v%d, 0" % r)
    p.e("s_waitcnt vmcnt(%d) lgkmcnt(0)" % (20 if WPOS == "1" else 16))
    p.e("s_barrier")
    p.ext(stamp_lines(1))
    def qp(s, groups, vm):
        return auto_lgkm(qproj_period(s % 4, s % 2, groups, vm).lines())
    p.e("s_mov_b32 s%d, 3" % sCNT)
    body = []
    for s in range(4):
        sl = (s + 3) % 4
        body += qp(s, [wx_dma_group("W", sl), wx_dma_group("X", sl)], 16)
    errs += check(strip_ctl(body + body), "qproj")
    p.lab("L_qloop"); p.ext(body)
    p.e("s_sub_u32 s%d, s%d, 1" % (sCNT, sCNT))
    p.e("s_cmp_lg_u32 s%d, 0" % sCNT)
    p.e("s_cbranch_scc1 L_qloop")
    tail = []
    tail += qp(12, [wx_dma_group("W", 3), wx_dma_group("X", 3)], 16)
    tail += qp(13, [kv_dma_group("K", 0)], 12)
    tail += qp(14, [kv_dma_group("K", 1), kv_dma_group("V", 0)], 12)
    tail += qp(15, [kv_dma_group("K", 2), kv_dma_group("V", 1)], 16)
    for blk in range(12, 16):
        for qb in range(4):
            tail.append("  " + mfma(acc_reg(blk, qb), vr(AR + blk * 4, 4), vr(XB + 16 + qb * 4, 4), acc_reg(blk, qb)))
    for which, sl in (("K", 3), ("V", 2)):
        setup, d, post = kv_dma_group(which, sl)
        tail += ["  " + x for x in setup] + ["  s_nop 0"] + ["  " + x for x in d] + ["  " + x for x in post]
    tail += stamp_lines(2)
    for kb in range(2):
        for t in range(4):
            tail.append("  ds_read_b128 %s, v%d offset:%d" % (ar(KA_ + (kb * 4 + t) * 4, 4), aK + t, kb * 4096))
    SC = 20
    conv = ["v_mov_b32 v%d, 0x%x" % (SC, f2u(SCALE)), "v_mov_b32 v%d, 0x%x" % (SC + 1, f2u(SCALE)), "v_mov_b32 v%d, 0x3f803f80" % (SC + 2)]
    for r in range(4): conv.append("v_accvgpr_write_b32 a%d, v%d" % (ONES + r, SC + 2))
    for t in range(4):
        for qb in range(4):
            X = ((2 * t) * 4 + qb) * 4; Y = X + 16; T = 64 + qb * 8
            for r in range(4): conv.append("v_accvgpr_read_b32 v%d, a%d" % (T + r, X + r))
            for r in range(4): conv.append("v_accvgpr_read_b32 v%d, a%d" % (T + 4 + r, Y + r))
        for qb in range(4):
            T = 64 + qb * 8
            for r in range(0, 8, 2): conv.append("v_pk_mul_f32 v[%d:%d], v[%d:%d], v[%d:%d]" % (T + r, T + r + 1, T + r, T + r + 1, SC, SC + 1))
        for qb in range(4):
            T = 64 + qb * 8
            for r in range(4): conv.append("v_cvt_pk_bf16_f32 v%d, v%d, v%d" % (96 + qb * 4 + r, T + 2 * r, T + 2 * r + 1))
        for qb in range(4):
            for r in range(4): conv.append("v_accvgpr_write_b32 a%d, v%d" % (QA + (t * 4 + qb) * 4 + r, 96 + qb * 4 + r))
    for t in range(4):
        for qb in range(4):
            X = 128 + ((2 * t) * 4 + qb) * 4; Y = X + 16
            for base in (X, X + 2, Y, Y + 2): conv.append("v_pk_mul_f32 v[%d:%d], v[%d:%d], v[%d:%d]" % (base, base + 1, base, base + 1, SC, SC + 1))
        for qb in range(4):
            X = 128 + ((2 * t) * 4 + qb) * 4; Y = X + 16
            conv.append("v_cvt_pk_bf16_f32 v%d, v%d, v%d" % (X, X, X + 1)); conv.append("v_cvt_pk_bf16_f32 v%d, v%d, v%d" % (X + 1, X + 2, X + 3))
            conv.append("v_cvt_pk_bf16_f32 v%d, v%d, v%d" % (X + 2, Y, Y + 1)); conv.append("v_cvt_pk_bf16_f32 v%d, v%d, v%d" % (X + 3, Y + 2, Y + 3))
        for qb in range(4):
            X = 128 + ((2 * t) * 4 + qb) * 4
            for r in range(4): conv.append("v_accvgpr_write_b32 a%d, v%d" % (Q2A + (t * 4 + qb) * 4 + r, X + r))
    cl, e2 = autofix(strip_ctl(tail[-40:]), ind(conv) + ["  s_waitcnt lgkmcnt(0)"], "conv"); errs += e2
    tail += cl
    p.ext(tail)
    p.e("s_cmp_lg_u32 s%d, 0" % sMODE)
    p.e("s_cbranch_scc1 L_slow")
    p.ext(stamp_lines(3))
    G = att_period(1, 0, 1, 0, 0, [], do_qk=True, do_pv=False, do_vread=False, first=True, sync=16)
    pro, e2 = autofix(strip_ctl(tail[-40:]), G.lines(), "attpro"); errs += [x for x in e2 if "LDS result" not in x]
    p.ext(pro); p.e("s_waitcnt lgkmcnt(0)")
    p.ext(stamp_lines(4))
    p.e("s_mov_b32 s%d, 0" % sCNT)
    endp = ["  s_waitcnt lgkmcnt(0)"]
    parts = []
    for tp in range(4):
        G0 = att_period(0, (tp + 1) % 4, 0, tp % 4, 0, [kv_dma_group("K", tp % 4)])
        G1 = att_period(1, (tp + 1) % 4, 1, tp % 4, 1, [kv_dma_group("V", (tp + 3) % 4)], sync=16, alt=((4, 32) if tp in (0, 1) else None))
        parts.append((G0.lines() + endp, G1.lines() + endp))
    flat = []
    for l0, l1 in parts: flat += l0 + l1
    errs += check(strip_ctl(flat + flat), "att")
    cz0 = att_period(0, 1, 0, 0, 0, [kv_dma_group("K", 0)], czero=True).lines() + endp
    cz1 = att_period(0, 1, 0, 0, 0, [kv_dma_group("K", 0)], czero=True)
    gcur = 9
    for k, (pre, op, post) in enumerate(epi_stores(True)):
        qb, t = k // 4, k % 4
        while cz1.cost(gcur) > 4: gcur += 1
        assert gcur < 32 + 9 * qb + 2 * t - 1, (qb, t, gcur)
        cz1.pre[gcur - 1].extend(pre); cz1.mem[gcur].append(op); cz1.post[gcur].extend(post)
        gcur += 2
    cz1l = cz1.lines() + endp
    sw = ["  v_accvgpr_mov_b32 a%d, a%d" % (QA + r, Q2A + r) for r in range(64)]
    swp = att_period(1, 0, 1, 3, 1, [kv_dma_group("V", 2)], first=True, sync=16)
    swl, e2 = autofix(strip_ctl(parts[3][0]) + sw, swp.lines() + endp, "swp"); errs += [x for x in e2 if "LDS result" not in x]
    ep1 = ind(epi_valu())
    ep1, e2 = autofix(strip_ctl(swl), ep1, "ep1"); errs += e2
    errs += check(strip_ctl(swl + ep1 + cz1l + parts[0][1]), "attsw")
    p.lab("L_aloop")
    for tp in range(4):
        l0, l1 = parts[tp]
        if tp == 0:
            p.e("s_cmp_eq_u32 s%d, 0" % sCNT); p.e("s_cbranch_scc1 L_cz0")
            p.e("s_cmp_eq_u32 s%d, 4" % sCNT); p.e("s_cbranch_scc1 L_cz1")
        p.ext(l0)
        if tp == 0: p.lab("L_cz_ret")
        if tp == 3:
            p.e("s_cmp_eq_u32 s%d, 3" % sCNT); p.e("s_cbranch_scc1 L_switch")
        p.ext(l1)
        if tp == 2:
            p.e("s_cmp_eq_u32 s%d, 4" % sCNT); p.e("s_cbranch_scc1 L_sig1")
            p.lab("L_sig1_ret")
    p.lab("L_switch_ret")
    p.e("s_add_u32 s%d, s%d, 1" % (sCNT, sCNT))
    p.e("s_cmp_lt_u32 s%d, 7" % sCNT)
    p.e("s_cbranch_scc1 L_aloop")
    last = []
    last += att_period(0, 1, 0, 0, 0, []).lines() + endp
    last += att_period(1, 1, 1, 0, 1, [kv_dma_group("V", 3)], sync=12).lines() + endp
    g = att_period(0, 2, 0, 1, 0, [])
    g.mem[40].append("buffer_load_dword v%d, off, s[%d:%d], s%d sc1" % (vT0 + 7, sD, sD + 3, sCOFF))
    last += g.lines() + endp
    last += att_period(1, 2, 1, 1, 1, [], sync=5).lines() + endp
    last += att_period(0, 3, 0, 2, 0, []).lines() + endp
    last += att_period(1, 3, 1, 2, 1, [], sync=0).lines() + endp
    errs += check(strip_ctl(flat + last), "last")
    p.ext(last)
    p.ext(stamp_lines(7))
    p.e("s_cmp_eq_u32 s%d, 0" % sSG1)
    p.e("s_cbranch_scc1 L_goslow")
    p.ext(poll_check("L_f1", 0, vT0 + 7))
    tp31a = att_period(0, 0, 0, 3, 0, [], do_kread=False)
    l31a = tp31a.lines() + endp
    oa = ind(oproj_addr(vT0 - 2))
    ex = op_issue(0, 1) + op_issue(1, 1) + op_issue(2, 1) + op_issue(3, 5) + op_issue(4, 1)
    tp31b = att_period(1, 0, 1, 3, 1, [], do_qk=False, do_kread=False, extra_mem=ex, extra_lo=1)
    l31b, e2 = autofix(strip_ctl(l31a + oa), tp31b.lines(), "tp31b"); errs += e2
    errs += check(strip_ctl(last[-200:] + l31a + oa + l31b), "tp31")
    p.ext(l31a); p.ext(oa); p.ext(l31b)
    p.ext(stamp_lines(8))
    ep2, e2 = autofix(strip_ctl(l31b), ind(epi_valu()), "ep2"); errs += e2
    p.ext(ep2)
    p.ext(ind(epi_bad("L_nobad2")))
    for pre, op, post in epi_stores():
        p.e(op)
        for x in post: p.e(x)
    p.e("s_waitcnt lgkmcnt(0)")
    p.e("s_barrier")
    p.e("v_add_u32 v110, %d, v%d" % ((LDS_BAD - LDS_CNT) & 0xffffffff, vCA))
    p.e("ds_read_b32 v111, v110")
    p.e("s_waitcnt lgkmcnt(0)")
    p.e("v_cmp_ne_u32 vcc, 0, v111")
    p.e("s_cbranch_vccnz L_goslow")
    p.lab("L_oproj")
    p.e("s_waitcnt vmcnt(40)")
    for x in op_areads(0, 0): p.e(x)
    p.e("s_waitcnt lgkmcnt(0)")
    p.ext(stamp_lines(9))
    p.e("s_mov_b32 s%d, 0" % sCNT)
    def steps_for(first):
        st = []
        for c in range(8):
            delta = ("sel", 1) if c == 2 else (5 if c == 6 else 1)
            vm = 36
            if first and c < 3: vm = [52, 52, 52][c]
            st.append(op_step(c, vm, True, delta, poll=(c == 4), czero=(first and c == 0)))
        return st
    it0 = steps_for(True); itn = steps_for(False)
    errs += check(sum(it0, []) + sum(itn, []), "oproj0")
    errs += check(sum(itn, []) + sum(itn, []), "oproj")
    for c in range(8):
        if c == 3:
            p.e("s_waitcnt vmcnt(36)"); p.e("s_barrier")
            p.e("s_cmp_lg_u32 s%d, 0" % sMODE); p.e("s_cbranch_scc1 L_sig2_skip")
            p.ext(signal("L_sig2_skip", 0x10000, vSIG, vSIG2))
        p.ext(it0[c])
    p.e("s_mov_b32 s%d, 1" % sCNT)
    p.lab("L_oloop")
    for c in range(8):
        if c == 3:
            p.e("s_cmp_eq_u32 s%d, 1" % sCNT); p.e("s_cbranch_scc1 L_f2chk"); p.lab("L_f2chk_ret")
        p.ext(itn[c])
    p.e("s_add_u32 s%d, s%d, 1" % (sCNT, sCNT))
    p.e("s_cmp_lt_u32 s%d, 3" % sCNT)
    p.e("s_cbranch_scc1 L_oloop")
    tl = []
    vms = [36, 36, 36, 36, 24, 12, 0, 0]
    for c in range(8): tl += op_step(c, vms[c], c <= 2, 1, last=(c == 7))
    errs += check(sum(itn, []) + tl, "oprojtail")
    p.ext(tl)
    p.ext(stamp_lines(10))
    p.e("s_barrier")
    p.e("s_lshl_b32 s%d, s%d, 15" % (sT + 1, sWAVE))
    p.e("v_add_u32 v33, s%d, v1" % (sT + 1))
    p.e("s_lshl_b32 s%d, s%d, 11" % (sT, sWAVE))
    p.e("v_add_u32 v34, s%d, v1" % sT)
    p.e("v_add_u32 v35, 0x10000, v34")
    p.e("v_add_u32 v36, 0x4000, v%d" % vOUT)
    red = ["s_nop 4"]
    for blk in range(32): red.append("ds_write_b128 v33, %s offset:%d" % (vr(ACC + blk * 4, 4), blk * 1024))
    red.append("s_waitcnt lgkmcnt(0)"); red.append("s_barrier")
    for src in range(4):
        for nb in range(4):
            for q2 in range(2):
                red.append("ds_read_b128 %s, v%d offset:%d" % (vr(128 + (src * 8 + nb * 2 + q2) * 4, 4), 34 if src < 2 else 35, (src % 2) * 32768 + (nb * 8 + q2) * 1024))
        if src == 1: red.append("s_waitcnt lgkmcnt(8)")
    red.append("s_waitcnt lgkmcnt(0)")
    for k in range(8):
        nb, q2 = k // 2, k % 2
        for r in range(4):
            a = 128 + k * 4 + r
            red.append("v_add_f32 v%d, v%d, v%d" % (a, a, a + 32)); red.append("v_add_f32 v%d, v%d, v%d" % (a + 64, a + 64, a + 96))
        for r in range(4):
            a = 128 + k * 4 + r
            red.append("v_add_f32 v%d, v%d, v%d" % (a, a, a + 64))
        red.append("v_cvt_pk_bf16_f32 v%d, v%d, v%d" % (64 + k * 2, 128 + k * 4, 128 + k * 4 + 1))
        red.append("v_cvt_pk_bf16_f32 v%d, v%d, v%d" % (65 + k * 2, 128 + k * 4 + 2, 128 + k * 4 + 3))
        red.append("buffer_store_dwordx2 v[%d:%d], v%d, s[%d:%d], s%d offen offset:%d" % (64 + k * 2, 65 + k * 2, vOUT if q2 == 0 else 36, sOUT, sOUT + 3, sOUTO, nb * 32))
    rl = ind(red)
    errs += check(tl[-40:] + rl, "red")
    p.ext(rl)
    if STAMPS:
        p.e("s_waitcnt vmcnt(0)"); p.ext(stamp_lines(11)); stamp_store(p)
    p.lab("L_end")
    p.e("s_endpgm")
    p.lab("L_cz0"); p.ext(cz0); p.e("s_branch L_cz_ret")
    p.lab("L_cz1"); p.ext(cz1l); p.e("s_branch L_cz_ret")
    p.lab("L_switch"); p.ext(sw); p.ext(swl)
    p.ext(stamp_lines(5)); p.ext(ep1); p.ext(ind(epi_bad("L_nobad1"))); p.ext(stamp_lines(6)); p.e("s_branch L_switch_ret")
    p.lab("L_sig1")
    p.e("v_add_u32 v%d, %d, v%d" % (vT0 + 4, (LDS_BAD - LDS_CNT) & 0xffffffff, vCA))
    p.e("ds_read_b32 v%d, v%d" % (vT0 + 5, vT0 + 4)); p.e("s_waitcnt lgkmcnt(0)")
    p.e("v_cmp_ne_u32 vcc, 0, v%d" % (vT0 + 5)); p.e("s_cbranch_vccnz L_sig1_ret")
    p.e("s_mov_b32 s%d, 1" % sSG1)
    p.ext(signal("L_sig1_skip", 1, vT0 + 4, vT0 + 5)); p.e("s_branch L_sig1_ret")
    p.lab("L_f2chk"); p.ext(poll_check("L_f2", 16, vPOLL)); p.e("s_branch L_f2chk_ret")
    p.lab("L_goslow")
    p.e("s_waitcnt vmcnt(0) lgkmcnt(0)"); p.e("s_barrier")
    p.e("s_mov_b32 s%d, 1" % sMODE); p.e("s_branch L_restart")
    errs += slow_attention(p)
    p.ext(poll_check("L_f1s", 0, vT0 + 7)[4:])
    p.ext(ind(oproj_addr(vT0 - 2)))
    for pre, op, post in op_issue(0, 1) + op_issue(1, 1) + op_issue(2, 1) + op_issue(3, 5) + op_issue(4, 1):
        for x in pre: p.e(x); p.e("s_nop 0")
        p.e(op)
        for x in post: p.e(x)
    p.e("s_waitcnt vmcnt(0)")
    p.e("s_mov_b32 s%d, 2" % sMODE)
    p.e("s_branch L_oproj")
    p.ext(SY.ool)
    for e in errs: print("HAZARD:", e, file=sys.stderr)
    return p.L

HDR = open("standalone__mha_block_cached__near_ridge.s.ref").read().split("; Override")[0]
def main():
    s = HDR + "; @launch grid=(256,1,1) block=(256,1,1) lds=163840\n"
    s += '.amdgcn_target "amdgcn-amd-amdhsa--gfx950"\n.text\n'
    s += ".globl %s\n.p2align 8\n.type %s,@function\n%s:\n" % (KNAME, KNAME, KNAME)
    s += "\n".join(kernel()) + "\n"
    s += '.section .rodata,"a"\n.p2align 6\n'
    s += """.amdhsa_kernel %s
  .amdhsa_next_free_vgpr 512
  .amdhsa_next_free_sgpr 96
  .amdhsa_accum_offset 256
  .amdhsa_group_segment_fixed_size 0
  .amdhsa_kernarg_size 64
  .amdhsa_user_sgpr_count 2
  .amdhsa_user_sgpr_kernarg_segment_ptr 1
  .amdhsa_system_sgpr_workgroup_id_x 1
.end_amdhsa_kernel
""" % KNAME
    open(OUT, "w").write(s)
main()
```

```python
import sys, struct
from asmlib import *

def opt(name, default=""):
    for a in sys.argv[1:]:
        if a.startswith("--" + name + "="): return a.split("=", 1)[1]
    return default
STAMPS = "--stamps" in sys.argv
POL_W = opt("pw"); POL_X = opt("px"); POL_WO = opt("pwo"); POL_OL = opt("pol", "sc1"); POL_OS = opt("pos", "sc1"); POL_KV = opt("pkv", "nt")
DIAG = opt('diag') == '1'
FORCE_SLOW = opt("forceslow") == "1"
def pol(x): return (x.replace("+", " ") + " ") if x else ""
OUT = [a for a in sys.argv[1:] if not a.startswith("--")]
OUT = OUT[0] if OUT else "out.s"
KNAME = "standalone__mha_block_cached__near_ridge_kernel"

aK = 2; aV = 6; vK = 14; vV = 18
aW = 20; aX = 24; vW = 25; vX = 29
vCA = 30
STP = 31
vCV = 0
AONE = 255
vT0 = 22
XB = 32; AR = 64
NM = 32; LS = 48; S_ = 64; P_ = 96; O_ = 128
QA = 0; Q2A = 64; KA_ = 128; VA_ = 160; ONES = 192
aWo = 96; vWo = 100; vB2 = 104; vPOLL = 105; vOUT = 106; vSIG = 107; vSIG2 = 108
OA = 64
ACC = 128
BREG = [64, 96, 0, 32, 128, 160, 192, 224]
sK, sV, sX, sW, sO = 4, 8, 12, 16, 20
sWAVE, sW4K, sKOFF, sVOFF, sWOFF, sXOFF, sCNT, sOOFF = 24, 25, 26, 27, 28, 29, 30, 31
sT = 48
sWK, sXK, sWB = 56, 57, 58
sB, sHP, sEXP = 59, 60, 61
sST = 62
sX1, sX2, sX3 = 66, 67, 68
sMODE = 69
sSG1 = 3
sSTB = 72
sD, sWO, sOUT = 76, 80, 84
sKS, sWOO, sOLO, sM0B, sCOFF, sQT13, sOUTO, sPOFF = 88, 89, 90, 91, 92, 93, 94, 95
sEX = 70
LDS_CNT = 163840 - 256
LDS_BAD = 163840 - 512
SCALE = 0.08838834764831845 * 1.4426950408889634
LIMIT = 2.0 ** 30
def f2u(f): return struct.unpack("<I", struct.pack("<f", f))[0]

class Prog:
    def __init__(self): self.L = []
    def e(self, s): self.L.append("  " + s)
    def lab(self, s): self.L.append(s + ":")
    def ext(self, l): self.L.extend(l)
def ind(l): return ["  " + x if not x.endswith(":") else x for x in l]

def mfma(d, a, b, c): return "v_mfma_f32_16x16x32_bf16 %s, %s, %s, %s" % (d, a, b, c)

def stamp_lines(i):
    if not STAMPS: return []
    return ["  s_memrealtime s[%d:%d]" % (sST, sST + 1), "  s_memtime s[%d:%d]" % (sST + 2, sST + 3), "  s_waitcnt lgkmcnt(0)",
            "  v_writelane_b32 v%d, s%d, %d" % (STP, sST, i), "  v_writelane_b32 v%d, s%d, %d" % (STP, sST + 2, 16 + i)]

def stamp_store(p):
    if not STAMPS: return
    p.e("s_add_u32 s%d, s46, 0x10000000" % sSTB)
    p.e("s_addc_u32 s%d, s47, 0" % (sSTB + 1))
    p.e("s_and_b32 s%d, s%d, 0xffff" % (sSTB + 1, sSTB + 1))
    p.e("s_mov_b32 s%d, 0x100000" % (sSTB + 2))
    p.e("s_mov_b32 s%d, 0x20000" % (sSTB + 3))
    p.e("s_lshl_b32 s%d, s2, 2" % sT)
    p.e("s_add_u32 s%d, s%d, s%d" % (sT, sT, sWAVE))
    p.e("s_lshl_b32 s%d, s%d, 7" % (sT, sT))
    p.e("v_mbcnt_lo_u32_b32 v2, -1, 0"); p.e("v_mbcnt_hi_u32_b32 v2, -1, v2")
    p.e("v_lshlrev_b32 v1, 2, v2")
    p.e("v_cmp_gt_u32 vcc, 32, v2")
    p.e("s_nop 1")
    p.e("s_and_saveexec_b64 s[%d:%d], vcc" % (sEX, sEX + 1))
    p.e("buffer_store_dword v%d, v1, s[%d:%d], s%d offen" % (STP, sSTB, sSTB + 3, sT))
    p.e("s_waitcnt vmcnt(0)")
    p.e("s_mov_b64 exec, s[%d:%d]" % (sEX, sEX + 1))

def srd(p, base, lo, hi, size):
    p.e("s_mov_b32 s%d, s%d" % (base, lo))
    p.e("s_and_b32 s%d, s%d, 0xffff" % (base + 1, hi))
    p.e("s_mov_b32 s%d, 0x%x" % (base + 2, size))
    p.e("s_mov_b32 s%d, 0x20000" % (base + 3))

class Gaps:
    def __init__(self, mf):
        self.mf = mf
        n = len(mf)
        self.pre = [[] for _ in range(n)]
        self.mem = [[] for _ in range(n)]
        self.val = [[] for _ in range(n)]
        self.post = [[] for _ in range(n)]
    def cost(self, g):
        return 4 * len(self.mem[g]) + sum(8 if x.startswith("v_exp") else 4 for x in self.val[g])
    def lines(self):
        L = []
        for g, m in enumerate(self.mf):
            if m is not None: L.append("  " + m)
            for x in self.pre[g] + self.mem[g] + self.val[g] + self.post[g]:
                L.append(x if x.endswith(":") else "  " + x)
        return L

def dma(voff, srdb, soff, j, policy):
    return "buffer_load_dwordx4 v%d, s[%d:%d], s%d offen offset:%d %slds" % (voff, srdb, srdb + 3, soff, j * 1024, pol(policy))
def kv_dma_group(which, slot):
    if which == "K":
        return (["s_add_u32 m0, s%d, 0x%x" % (sW4K, slot * 16384)], [dma(vK + j, sK, sKOFF, j, POL_KV) for j in range(4)],
                ["s_add_u32 s%d, s%d, 0x4000" % (sKOFF, sKOFF)])
    return (["s_add_u32 m0, s%d, 0x%x" % (sW4K, 65536 + slot * 16384)], [dma(vV + (j & 1), sV, sVOFF, j, POL_KV) for j in range(4)],
            ["s_add_u32 s%d, s%d, 0x4000" % (sVOFF, sVOFF)])
def wx_dma_group(which, slot):
    if which == "W":
        return (["s_add_u32 m0, s%d, 0x%x" % (sW4K, slot * 16384)], [dma(vW + j, sW, sWOFF, j, POL_W) for j in range(4)],
                ["s_add_u32 s%d, s%d, 0x40000" % (sWK, sWK), "s_and_b32 s%d, s%d, 0x3fffff" % (sWK, sWK), "s_add_u32 s%d, s%d, s%d" % (sWOFF, sWK, sWB)])
    so = [sXOFF, sX1, sX2, sX3]
    return (["s_add_u32 m0, s%d, 0x%x" % (sW4K, 65536 + slot * 16384)], [dma(vX, sX, so[j], j, POL_X) for j in range(4)],
            ["s_add_u32 s%d, s%d, 64" % (sXK, sXK), "s_and_b32 s%d, s%d, 0x3ff" % (sXK, sXK), "s_add_u32 s%d, s%d, s%d" % (sXOFF, sXK, sWB),
             "s_add_u32 s%d, s%d, 15360" % (sX1, sXOFF), "s_add_u32 s%d, s%d, 30720" % (sX2, sXOFF), "s_add_u32 s%d, s%d, 46080" % (sX3, sXOFF)])
def place_dma_groups(G, groups, gaps):
    k = 0
    for setup, d, post in groups:
        G.pre[gaps[k] - 1].extend(setup)
        for j in range(4): G.mem[gaps[k + j]].append(d[j])
        n = len(post)
        for i, x in enumerate(post): G.pre[min(gaps[k + 3] + 1 + i // 2, len(G.mf) - 1)].append(x)
        k += 4

_uid = [0]
class Sync:
    def __init__(self): self.ool = []
    def arrive(self, vm, alt=None):
        if DIAG:
            pre = ["s_waitcnt lgkmcnt(0)", "s_memtime s[96:97]", "s_waitcnt lgkmcnt(0)", "s_waitcnt vmcnt(%d)" % (vm if alt is None else vm), "s_memtime s[98:99]", "s_waitcnt lgkmcnt(0)",
                   "s_sub_u32 s98, s98, s96", "s_add_u32 s100, s100, s98"]
            return pre, "ds_add_u32 v%d, a%d" % (vCA, AONE)
        if alt is None:
            return ["s_waitcnt vmcnt(%d) lgkmcnt(0)" % vm], "ds_add_u32 v%d, a%d" % (vCA, AONE)
        _uid[0] += 1
        u = _uid[0]
        self.ool += ["L_alt%d:" % u, "  s_waitcnt vmcnt(%d) lgkmcnt(0)" % alt[1], "  s_branch L_alt%d_ret" % u]
        return ["s_cmp_eq_u32 s%d, %d" % (sCNT, alt[0]), "s_cbranch_scc1 L_alt%d" % u, "s_waitcnt vmcnt(%d) lgkmcnt(0)" % vm, "L_alt%d_ret:" % u], "ds_add_u32 v%d, a%d" % (vCA, AONE)
    def check(self, vcv):
        _uid[0] += 1
        u = _uid[0]
        rd = "ds_read_b32 v%d, v%d" % (vcv, vCA)
        cmp_ = "v_cmp_gt_u32 vcc, s%d, v%d" % (sEXP, vcv)
        br = ["s_cbranch_vccnz L_spin%d" % u, "L_spin%d_ret:" % u, "s_add_u32 s%d, s%d, 4" % (sEXP, sEXP)]
        self.ool += ["L_spin%d:" % u] + (["  s_add_u32 s101, s101, 1"] if DIAG else []) + ["  ds_read_b32 v%d, v%d" % (vcv, vCA), "  s_waitcnt lgkmcnt(0)",
                     "  v_cmp_gt_u32 vcc, s%d, v%d" % (sEXP, vcv), "  s_cbranch_vccnz L_spin%d" % u, "  s_branch L_spin%d_ret" % u]
        return rd, cmp_, br
SY = Sync()

def acc_reg(blk, qb):
    if blk < 8: return ar((blk * 4 + qb) * 4, 4)
    return vr(128 + ((blk - 8) * 4 + qb) * 4, 4)

def qproj_period(s_slot, par, groups, vm, sync=True):
    mf = []
    for blk in range(12, 16):
        for qb in range(4):
            mf.append(mfma(acc_reg(blk, qb), vr(AR + blk * 4, 4), vr(XB + (par ^ 1) * 16 + qb * 4, 4), acc_reg(blk, qb)))
    for blk in range(0, 12):
        for qb in range(4):
            mf.append(mfma(acc_reg(blk, qb), vr(AR + blk * 4, 4), vr(XB + par * 16 + qb * 4, 4), acc_reg(blk, qb)))
    G = Gaps(mf)
    so = s_slot * 16384
    for qb in range(4):
        G.mem[qb].append("ds_read_b128 %s, v%d offset:%d" % (vr(XB + par * 16 + qb * 4, 4), aX, so + qb * 1024))
    g = 0
    for blk in range(16):
        h, t, Y = blk // 8, (blk % 8) // 2, blk % 2
        for jj in range(2):
            lo = int((blk * 2 + jj) * 1.3) + 1
            if blk >= 12: lo = max(lo, (blk - 12) * 4 + 4)
            g = lo
            while G.cost(g) >= 4 and g < lo + 1 and G.cost(g) >= 8: g += 1
            G.mem[g].append("ds_read_b64_tr_b16 %s, v%d offset:%d" % (vr(AR + blk * 4 + 2 * jj, 2), aW + t, so + jj * 2048 + h * 256 + 8 * Y))
    if groups:
        cand = [g for g in range(3, 44) if G.cost(g) <= 4]
        n = 4 * len(groups)
        pick = [cand[int((k + 0.5) * len(cand) / n)] for k in range(n)]
        place_dma_groups(G, groups, pick)
    if sync:
        w, add = SY.arrive(vm, None)
        G.pre[47].extend(w); G.mem[47].append(add)
        rd, c, br = SY.check(vCV)
        G.mem[55].append(rd)
        G.pre[61].append("s_waitcnt lgkmcnt(0)"); G.val[61].append(c)
        G.post[62].extend(br)
    return G

def auto_lgkm(lines):
    ins = [Ins(l) for l in lines]
    out = []; pend = []; inserts = {}; lastm = None
    for n, i in enumerate(ins):
        if i.kind == "mfma":
            need = None
            regs = set(i.r) | set(i.c)
            for k, (idx, w) in enumerate(pend):
                if regs & w: need = k
            if need is not None:
                at = lastm + 1 if lastm is not None else n
                assert pend[need][0] < at, "LDS read too late for consumer: %s" % i.text
                cnt = min(15, sum(1 for (idx, w) in pend[need + 1:] if idx < at))
                inserts.setdefault(at, []).append(cnt)
                pend = pend[need + 1:]
            lastm = n
        if i.kind in ("dsr", "dsw"): pend.append((n, set(i.w)))
        if i.kind == "wait" and i.lg is not None:
            pend = pend[len(pend) - i.lg:] if i.lg > 0 else []
    for n, l in enumerate(lines):
        if n in inserts: out.append("  s_waitcnt lgkmcnt(%d)" % min(inserts[n]))
        out.append(l)
    return out

def first_unit_valu(upar):
    per = []
    for qb in range(4):
        A = S_ + (qb * 2) * 4; Bq = A + 4
        m = vT0 + 2 * (qb % 2); m2 = m + 1
        L = ["v_max3_f32 v%d, v%d, v%d, v%d" % (m, A, A + 1, A + 2),
             "v_max3_f32 v%d, v%d, v%d, v%d" % (m, m, A + 3, Bq),
             "v_max3_f32 v%d, v%d, v%d, v%d" % (m, m, Bq + 1, Bq + 2),
             "v_max_f32 v%d, v%d, v%d" % (m, m, Bq + 3),
             "v_mov_b32 v%d, v%d" % (m2, m),
             "v_permlane16_swap_b32 v%d, v%d" % (m, m2),
             "v_max_f32 v%d, v%d, v%d" % (m, m, m2),
             "v_mov_b32 v%d, v%d" % (m2, m),
             "v_permlane32_swap_b32 v%d, v%d" % (m, m2),
             "v_max_f32 v%d, v%d, v%d" % (m, m, m2)]
        for r in range(4): L.append("v_sub_f32 v%d, 0, v%d" % (NM + qb * 4 + r, m))
        for r in range(8): L.append("v_sub_f32 v%d, v%d, v%d" % (A + r, A + r, m))
        for r in range(8): L.append("v_exp_f32 v%d, v%d" % (A + r, A + r))
        for kb in range(2):
            for hh in range(2):
                L.append("v_cvt_pk_bf16_f32 v%d, v%d, v%d" % (P_ + (upar ^ 1) * 16 + qb * 4 + kb * 2 + hh, A + kb * 4 + hh * 2, A + kb * 4 + hh * 2 + 1))
        per.append(L)
    return per

def att_period(upar, kslot, khalf, vslot, vhalf, groups, do_qk=True, do_pv=True, do_vread=True, do_kread=True, czero=False,
               first=False, sync=None, extra_mem=None, extra_lo=0, alt=None):
    mf = []
    for qb in range(4):
        for kb in range(2):
            b = qb * 2 + kb
            for t in range(4):
                c = ("0" if first else vr(NM + qb * 4, 4)) if t == 0 else vr(S_ + b * 4, 4)
                mf.append(mfma(vr(S_ + b * 4, 4), ar(KA_ + (kb * 4 + t) * 4, 4), ar(QA + (t * 4 + qb) * 4, 4), c) if do_qk else None)
    for qb in range(4):
        pf = vr(P_ + upar * 16 + qb * 4, 4)
        for db in range(8):
            o = vr(O_ + (db * 4 + qb) * 4, 4)
            mf.append(mfma(o, ar(VA_ + db * 4, 4), pf, "0" if czero else o) if do_pv else None)
        l = vr(LS + qb * 4, 4)
        mf.append(mfma(l, ar(ONES, 4), pf, "0" if czero else l) if do_pv else None)
    G = Gaps(mf)
    n = len(mf)
    expg = []
    if do_qk and not first:
        expg = [8 + int(round(e * 57 / 31.0)) for e in range(32)]
        for e, g in enumerate(expg):
            b, r = e // 4, e % 4
            G.val[g].append("v_exp_f32 v%d, v%d" % (S_ + b * 4 + r, S_ + b * 4 + r))
    es = set(expg)
    ne = [g for g in range(n) if g not in es]
    if do_vread:
        vg = [g for g in ne if g < 28]
        reads = []
        for db in range(8):
            for jj in range(2):
                reads.append("ds_read_b64_tr_b16 %s, v%d offset:%d" % (ar(VA_ + db * 4 + 2 * jj, 2), aV + db, vslot * 16384 + (vhalf * 32 + 16 * jj) * 256))
        for rd, g in zip(reads, vg[:16]): G.mem[g].append(rd)
    if groups and opt("anodma") != "1":
        assert len(groups) == 1
        dp = opt("dmapos", "1,3,5,7")
        place_dma_groups(G, groups, [int(x) for x in dp.split(",")])
    if do_kread:
        kg = [g for g in ne if g >= 33 and g <= 51]
        reads = []
        for kb in range(2):
            for t in range(4):
                reads.append("ds_read_b128 %s, v%d offset:%d" % (ar(KA_ + (kb * 4 + t) * 4, 4), aK + t, kslot * 16384 + (khalf * 2 + kb) * 4096))
        assert len(kg) >= 8, kg
        for rd, g in zip(reads, kg[:8]): G.mem[g].append(rd)
    if sync is not None and opt("anosync") == "1":
        G.pre[53].append("s_waitcnt vmcnt(%d) lgkmcnt(0)" % sync)
        if opt("abar") == "1": G.post[67].append("s_barrier")
    elif sync is not None:
        w, add = SY.arrive(sync, alt)
        G.pre[53].extend(w); G.mem[53].append(add)
        rd, c, br = SY.check(vCV)
        G.mem[60].append(rd)
        G.pre[66].append("s_waitcnt lgkmcnt(0)"); G.val[66].append(c)
        G.post[67].extend(br)
    if do_qk and not first:
        for b in range(8):
            qb, kb = b // 2, b % 2
            for hh in range(2):
                ge = expg[b * 4 + hh * 2 + 1]
                g = [g for g in ne if g > ge and G.cost(g) <= 4][0]
                G.val[g].append("v_cvt_pk_bf16_f32 v%d, v%d, v%d" % (P_ + (upar ^ 1) * 16 + qb * 4 + kb * 2 + hh, S_ + b * 4 + hh * 2, S_ + b * 4 + hh * 2 + 1))
    if do_qk and first:
        per = first_unit_valu(upar)
        g = 0
        for qb in range(4):
            g = max(g, 8 * qb + 7 + 4)
            for x in per[qb]:
                while G.cost(g) >= 8 and g < n - 1: g += 1
                G.val[g].append(x)
    if extra_mem:
        cand = [g for g in range(max(1, extra_lo), n - 2) if G.cost(g) <= 4]
        cand2 = [g for g in range(max(1, extra_lo), n - 2) if G.cost(g) == 0]
        slots = sorted(cand + cand2)
        assert len(slots) >= len(extra_mem), (len(slots), len(extra_mem))
        step = len(slots) / float(len(extra_mem))
        for k, (pre, op, post) in enumerate(extra_mem):
            g = slots[int(k * step)]
            G.pre[g - 1].extend(pre) if pre and g - 1 >= 0 else None
            G.mem[g].append(op)
            G.post[g].extend(post)
    if opt("anov") == "1":
        for gg in range(n): G.mem[gg] = [x for x in G.mem[gg] if "tr_b16" not in x]
    if opt("anok") == "1":
        for gg in range(n): G.mem[gg] = [x for x in G.mem[gg] if "ds_read_b128" not in x]
    if opt("anoexp") == "1":
        for gg in range(n): G.val[gg] = [x for x in G.val[gg] if "v_exp" not in x]
    if opt("anocvt") == "1":
        for gg in range(n): G.val[gg] = [x for x in G.val[gg] if "v_cvt" not in x]
    if do_pv: G.pre[31].append("s_waitcnt lgkmcnt(0)")
    return G

def epi_valu():
    R = S_
    ep = ["s_nop 7"]
    ep.append("v_mov_b32 v%d, 0x%x" % (R + 9, f2u(LIMIT)))
    for qb in range(4): ep.append("v_rcp_f32 v%d, v%d" % (R + 2 * qb, LS + qb * 4))
    ep.append("v_cmp_nle_f32 s[%d:%d], v%d, v%d" % (sT, sT + 1, LS, R + 9))
    ep.append("v_cmp_nle_f32 s[%d:%d], v%d, v%d" % (sT + 2, sT + 3, LS + 4, R + 9))
    ep.append("v_cmp_nle_f32 s[%d:%d], v%d, v%d" % (sT + 4, sT + 5, LS + 8, R + 9))
    ep.append("v_cmp_nle_f32 vcc, v%d, v%d" % (LS + 12, R + 9))
    for qb in range(4): ep.append("v_mov_b32 v%d, v%d" % (R + 2 * qb + 1, R + 2 * qb))
    ep.append("s_or_b64 s[%d:%d], s[%d:%d], s[%d:%d]" % (sT, sT + 1, sT, sT + 1, sT + 2, sT + 3))
    ep.append("s_or_b64 vcc, vcc, s[%d:%d]" % (sT + 4, sT + 5))
    ep.append("s_or_b64 vcc, vcc, s[%d:%d]" % (sT, sT + 1))
    if FORCE_SLOW: ep.append("s_mov_b64 vcc, -1")
    for t in range(4):
        for qb in range(4):
            X = O_ + ((2 * t) * 4 + qb) * 4; Y = O_ + ((2 * t + 1) * 4 + qb) * 4
            for base in (X, X + 2, Y, Y + 2):
                ep.append("v_pk_mul_f32 v[%d:%d], v[%d:%d], v[%d:%d]" % (base, base + 1, base, base + 1, R + 2 * qb, R + 2 * qb + 1))
        for qb in range(4):
            X = O_ + ((2 * t) * 4 + qb) * 4; Y = O_ + ((2 * t + 1) * 4 + qb) * 4
            ep.append("v_cvt_pk_bf16_f32 v%d, v%d, v%d" % (X, X, X + 1))
            ep.append("v_cvt_pk_bf16_f32 v%d, v%d, v%d" % (X + 1, X + 2, X + 3))
            ep.append("v_cvt_pk_bf16_f32 v%d, v%d, v%d" % (X + 2, Y, Y + 1))
            ep.append("v_cvt_pk_bf16_f32 v%d, v%d, v%d" % (X + 3, Y + 2, Y + 3))
    return ep
def epi_bad(label):
    return ["s_cbranch_vccz %s" % label,
            "v_add_u32 v%d, %d, v%d" % (S_ + 10, LDS_BAD - LDS_CNT, vCA), "v_mov_b32 v%d, 1" % (S_ + 11),
            "ds_write_b32 v%d, v%d" % (S_ + 10, S_ + 11), "s_waitcnt lgkmcnt(0)",
            label + ":"]
def epi_stores(qmajor=False):
    L = []
    if not qmajor:
        for t in range(4):
            for qb in range(4):
                X = O_ + ((2 * t) * 4 + qb) * 4
                post = ["s_add_u32 s%d, s%d, 0x4000" % (sOOFF, sOOFF)] if qb == 3 else []
                L.append(([], "buffer_store_dwordx4 v[%d:%d], v1, s[%d:%d], s%d offen offset:%d %s" % (X, X + 3, sO, sO + 3, sOOFF, qb * 1024, pol(POL_OS)), post))
        return L
    so = [sOOFF, sT + 4, sT + 5, sT + 6]
    for qb in range(4):
        for t in range(4):
            X = O_ + ((2 * t) * 4 + qb) * 4
            pre = ["s_add_u32 s%d, s%d, 0x%x" % (so[k], sOOFF, k * 0x4000) for k in (1, 2, 3)] if (qb == 0 and t == 0) else []
            post = ["s_add_u32 s%d, s%d, 0x10000" % (sOOFF, sOOFF)] if (qb == 3 and t == 3) else []
            L.append((pre, "buffer_store_dwordx4 v[%d:%d], v1, s[%d:%d], s%d offen offset:%d %s" % (X, X + 3, sO, sO + 3, so[t], qb * 1024, pol(POL_OS)), post))
    return L

def signal(label, val, va, vb):
    return ["  s_cmp_lg_u32 s%d, 0" % sWAVE, "  s_cbranch_scc1 %s" % label,
            "  s_mov_b64 exec, 1",
            "  v_mov_b32 v%d, 0x%x" % (va, val), "  v_mov_b32 v%d, s%d" % (vb, sPOFF),
            "  buffer_atomic_add v%d, v%d, s[%d:%d], 0 offen sc1" % (va, vb, sD, sD + 3),
            "  s_mov_b64 exec, -1", label + ":"]

def poll_check(label, shift, vp):
    return ["  v_readfirstlane_b32 s%d, v%d" % (sT, vp),
            "  s_bfe_u32 s%d, s%d, 0x%x" % (sT, sT, (8 << 16) | shift),
            "  s_cmp_eq_u32 s%d, 4" % sT,
            "  s_cbranch_scc1 %s_ok" % label,
            "%s_spin:" % label,
            "  s_sleep 8",
            "  buffer_load_dword v%d, off, s[%d:%d], s%d sc1" % (vp, sD, sD + 3, sCOFF),
            "  s_waitcnt vmcnt(0)",
            "  v_readfirstlane_b32 s%d, v%d" % (sT, vp),
            "  s_bfe_u32 s%d, s%d, 0x%x" % (sT, sT, (8 << 16) | shift),
            "  s_cmp_eq_u32 s%d, 4" % sT,
            "  s_cbranch_scc0 %s_spin" % label,
            "%s_ok:" % label]

def op_advance(delta):
    L = []
    if isinstance(delta, int): L.append("s_add_u32 s%d, s%d, %d" % (sKS, sKS, delta))
    else:
        L.append("s_cmp_eq_u32 s%d, %d" % (sCNT, delta[1]))
        L.append("s_cselect_b32 s%d, -23, 5" % sT)
        L.append("s_add_u32 s%d, s%d, s%d" % (sKS, sKS, sT))
    L.append("s_lshl_b32 s%d, s%d, 15" % (sWOO, sKS))
    L.append("s_lshl_b32 s%d, s%d, 14" % (sOLO, sKS))
    L.append("s_add_u32 s%d, s%d, s%d" % (sOLO, sOLO, sQT13))
    return L
def op_issue(slot, delta):
    ops = []
    for qb in range(8):
        ops.append(([], "buffer_load_dwordx4 %s, v%d, s[%d:%d], s%d offen offset:%d %s" % (ar(BREG[slot] + qb * 4, 4), 1 if qb < 4 else vB2, sO, sO + 3, sOLO, (qb % 4) * 1024, pol(POL_OL)), []))
    for m in range(4):
        pre = ["s_add_u32 m0, s%d, 0x%x" % (sM0B, slot * 4096)] if m == 0 else []
        ops.append((pre, "buffer_load_dwordx4 v%d, s[%d:%d], s%d offen offset:%d %slds" % (vWo + m, sWO, sWO + 3, sWOO, m * 1024, pol(POL_WO)),
                    op_advance(delta) if m == 3 else []))
    return ops
def op_areads(slot, par):
    R = []
    for nb in range(4):
        for jj in range(2):
            R.append("ds_read_b64_tr_b16 %s, v%d offset:%d" % (vr(OA + par * 16 + nb * 4 + 2 * jj, 2), aWo + nb, slot * 4096 + jj * 2048))
    return R
def op_step(c, vm, issue, delta, last=False, poll=False, czero=False):
    mf = []
    for nb in range(4):
        for qb in range(8):
            acc = vr(ACC + (nb * 8 + qb) * 4, 4)
            mf.append(mfma(acc, vr(OA + (c % 2) * 16 + nb * 4, 4), ar(BREG[c] + qb * 4, 4), "0" if czero else acc))
    G = Gaps(mf)
    if not last:
        for k, x in enumerate(op_areads((c + 1) % 8, (c + 1) % 2)): G.mem[1 + 3 * k].append(x)
    if issue:
        ops = op_issue((c + 5) % 8, delta)
        free = [g for g in range(1, 30) if not G.mem[g]]
        sel = [free[int(k * len(free) / 12)] for k in range(12)]
        for (pre, op, post), g in zip(ops, sel):
            G.pre[g - 1].extend(pre); G.mem[g].append(op); G.pre[g + 1].extend(post)
    if poll:
        G.mem[30].append("buffer_load_dword v%d, off, s[%d:%d], s%d sc1" % (vPOLL, sD, sD + 3, sCOFF))
    return ["  s_waitcnt vmcnt(%d)" % vm] + G.lines() + ["  s_waitcnt lgkmcnt(0)"]

def strip_ctl(lines):
    return [l for l in lines if not (l.strip().startswith("s_cbranch") or l.strip().endswith(":"))]


def lane_vals(p, base):
    vL, vL16, vG, vR, vC4 = base, base + 1, base + 2, base + 3, base + 4
    L = ["v_mbcnt_lo_u32_b32 v%d, -1, 0" % vL, "v_mbcnt_hi_u32_b32 v%d, -1, v%d" % (vL, vL),
         "v_and_b32 v%d, 15, v%d" % (vL16, vL), "v_lshrrev_b32 v%d, 4, v%d" % (vG, vL),
         "v_lshrrev_b32 v%d, 2, v%d" % (vR, vL16), "v_and_b32 v%d, 3, v%d" % (vC4, vL)]
    return L

def oproj_addr(tb):
    vL, vL16, vG, vR, vC4, t1, t2, t3 = [tb + i for i in range(8)]
    L = lane_vals(None, tb)
    L += ["v_lshl_add_u32 v%d, v%d, 2, v%d" % (t2, vG, vR),
          "v_lshrrev_b32 v%d, 1, v%d" % (t3, t2), "v_and_b32 v%d, 3, v%d" % (t3, t3),
          "v_lshlrev_b32 v%d, 7, v%d" % (t2, t2), "v_lshl_add_u32 v%d, v%d, 3, v%d" % (t2, vC4, t2), "v_add_u32 v%d, s%d, v%d" % (t2, sM0B, t2)]
    for nb in range(4):
        L += ["v_xor_b32 v%d, %d, v%d" % (t1, nb, t3), "v_lshl_add_u32 v%d, v%d, 5, v%d" % (aWo + nb, t1, t2)]
    L += ["v_lshlrev_b32 v%d, 1, v%d" % (t1, vG), "v_and_b32 v%d, 7, v%d" % (t2, vL), "v_xor_b32 v%d, v%d, v%d" % (t1, t1, t2), "v_lshlrev_b32 v%d, 4, v%d" % (t1, t1),
          "v_lshrrev_b32 v%d, 3, v%d" % (t2, vL), "v_lshl_add_u32 v%d, v%d, 10, v%d" % (t1, t2, t1)]
    for m in range(4): L.append("v_add_u32 v%d, %d, v%d" % (vWo + m, m * 7168, t1))
    L += ["v_add_u32 v%d, 0x1000, v1" % vB2, "v_lshlrev_b32 v%d, 10, v%d" % (vOUT, vL16), "v_lshl_add_u32 v%d, v%d, 3, v%d" % (vOUT, vG, vOUT),
          "s_lshl_b32 s%d, s%d, 5" % (sKS, sWAVE)] + op_advance(0)
    return L

def slow_attention(p):
    e = p.e
    M_ = NM
    p.lab("L_slow")
    e("s_mov_b32 s%d, 0" % (sT + 6))
    p.lab("L_slow_head")
    for qb in range(4): e("v_mov_b32 v%d, 0xff800000" % (M_ + 4 * qb))
    for r in range(128): e("v_mov_b32 v%d, 0" % (O_ + r))
    for r in range(16): e("v_mov_b32 v%d, 0" % (LS + r))
    e("s_lshl_b32 s%d, s%d, 18" % (sKOFF, sT + 6)); e("s_add_u32 s%d, s%d, s%d" % (sKOFF, sKOFF, sW4K)); e("s_mov_b32 s%d, s%d" % (sVOFF, sKOFF))
    e("s_mov_b32 s%d, 0" % sCNT)
    p.lab("L_slow_tile")
    e("s_waitcnt vmcnt(0) lgkmcnt(0)"); e("s_barrier")
    for which in ("K", "V"):
        setup, d, post = kv_dma_group(which, 0)
        for x in setup: e(x)
        e("s_nop 0")
        for x in d: e(x)
        for x in post: e(x)
    e("s_waitcnt vmcnt(0)"); e("s_barrier")
    body = []
    for half in range(2):
        for kb in range(2):
            for t in range(4): body.append("ds_read_b128 %s, v%d offset:%d" % (ar(KA_ + (kb * 4 + t) * 4, 4), aK + t, (half * 2 + kb) * 4096))
        for db in range(8):
            for jj in range(2): body.append("ds_read_b64_tr_b16 %s, v%d offset:%d" % (ar(VA_ + db * 4 + 2 * jj, 2), aV + db, (half * 32 + 16 * jj) * 256))
        body.append("s_waitcnt lgkmcnt(0)")
        for qb in range(4):
            for kb in range(2):
                b = qb * 2 + kb
                for t in range(4):
                    body.append(mfma(vr(S_ + b * 4, 4), ar(KA_ + (kb * 4 + t) * 4, 4), ar(QA + (t * 4 + qb) * 4, 4), "0" if t == 0 else vr(S_ + b * 4, 4)))
        for qb in range(4):
            A = S_ + qb * 8; m = vT0; m2 = vT0 + 1; al = vT0 + 2; mo = M_ + 4 * qb
            body += ["v_max3_f32 v%d, v%d, v%d, v%d" % (m, A, A + 1, A + 2), "v_max3_f32 v%d, v%d, v%d, v%d" % (m, m, A + 3, A + 4),
                     "v_max3_f32 v%d, v%d, v%d, v%d" % (m, m, A + 5, A + 6), "v_max3_f32 v%d, v%d, v%d, v%d" % (m, m, A + 7, mo),
                     "v_mov_b32 v%d, v%d" % (m2, m), "v_permlane16_swap_b32 v%d, v%d" % (m, m2), "v_max_f32 v%d, v%d, v%d" % (m, m, m2),
                     "v_mov_b32 v%d, v%d" % (m2, m), "v_permlane32_swap_b32 v%d, v%d" % (m, m2), "v_max_f32 v%d, v%d, v%d" % (m, m, m2),
                     "v_sub_f32 v%d, v%d, v%d" % (al, mo, m), "v_exp_f32 v%d, v%d" % (al, al), "v_mov_b32 v%d, v%d" % (mo, m)]
            for r in range(8): body.append("v_sub_f32 v%d, v%d, v%d" % (A + r, A + r, m))
            for r in range(8): body.append("v_exp_f32 v%d, v%d" % (A + r, A + r))
            for k in range(4): body.append("v_cvt_pk_bf16_f32 v%d, v%d, v%d" % (P_ + qb * 4 + k, A + 2 * k, A + 2 * k + 1))
            for db in range(8):
                for r in range(4):
                    o = O_ + (db * 4 + qb) * 4 + r
                    body.append("v_mul_f32 v%d, v%d, v%d" % (o, o, al))
            for r in range(4): body.append("v_mul_f32 v%d, v%d, v%d" % (LS + qb * 4 + r, LS + qb * 4 + r, al))
        for qb in range(4):
            pf = vr(P_ + qb * 4, 4)
            for db in range(8):
                o = vr(O_ + (db * 4 + qb) * 4, 4)
                body.append(mfma(o, ar(VA_ + db * 4, 4), pf, o))
            body.append(mfma(vr(LS + qb * 4, 4), ar(ONES, 4), pf, vr(LS + qb * 4, 4)))
        body.append("s_nop 7"); body.append("s_nop 1")
    bl, errs = autofix([], ind(body), "slow")
    bl2, errs2 = autofix(bl, list(bl), "slow2")
    p.ext(bl2)
    e("s_add_u32 s%d, s%d, 1" % (sCNT, sCNT)); e("s_cmp_lt_u32 s%d, 16" % sCNT); e("s_cbranch_scc1 L_slow_tile")
    ep = [x for x in epi_valu() if not x.startswith(("v_cmp_nle", "s_or_b64", "s_mov_b64 vcc"))]
    el, e3 = autofix(bl2[-30:], ind(ep), "slowep")
    p.ext(el)
    for pre, op, post in epi_stores():
        e(op)
        for x in post: e(x)
    e("s_add_u32 s%d, s%d, 1" % (sT + 6, sT + 6)); e("s_cmp_lt_u32 s%d, 2" % (sT + 6))
    e("s_cbranch_scc0 L_slow_done")
    e("s_nop 4")
    for r in range(64): e("v_accvgpr_mov_b32 a%d, a%d" % (QA + r, Q2A + r))
    e("s_branch L_slow_head")
    p.lab("L_slow_done")
    e("s_waitcnt vmcnt(0) lgkmcnt(0)"); e("s_barrier")
    e("s_sub_u32 s%d, 0x10001, s%d" % (sT + 7, sSG1))
    sg = signal("L_sig_slow", 0, S_ + 12, S_ + 13)
    sg = [x.replace("v_mov_b32 v%d, 0x0" % (S_ + 12), "v_mov_b32 v%d, s%d" % (S_ + 12, sT + 7)) for x in sg]
    p.ext(sg)
    return errs + errs2 + e3

def kernel():
    p = Prog(); errs = []
    p.e("s_cmp_ge_u32 s2, 256")
    p.e("s_cbranch_scc1 L_end")
    p.e("v_lshrrev_b32 v2, 6, v0")
    p.e("s_mov_b32 s%d, 0" % sMODE)
    p.e("s_mov_b32 s%d, 0" % sSG1)
    p.e("v_readfirstlane_b32 s%d, v2" % sWAVE)
    if STAMPS: p.e("v_mov_b32 v%d, 0" % STP)
    p.lab("L_restart")
    p.e("s_load_dwordx16 s[32:47], s[0:1], 0")
    vL, vL16, vG, vR, vC4, vt1, vt2, vt3 = 132, 133, 134, 135, 136, 137, 138, 139
    p.ext(ind(lane_vals(p, 132)))
    p.e("v_lshlrev_b32 v1, 4, v%d" % vL)
    p.e("s_and_b32 s%d, s2, 7" % sT)
    p.e("s_lshr_b32 s%d, s2, 3" % (sT + 1))
    p.e("s_lshl_b32 s%d, s%d, 1" % (sT, sT))
    p.e("s_lshr_b32 s%d, s%d, 4" % (sT + 2, sT + 1))
    p.e("s_add_u32 s%d, s%d, s%d" % (sB, sT, sT + 2))
    p.e("s_and_b32 s%d, s%d, 15" % (sHP, sT + 1))
    p.e("s_lshl_b32 s%d, s%d, 12" % (sW4K, sWAVE))
    p.e("v_lshrrev_b32 v%d, 5, v%d" % (vt2, vL))
    p.e("v_and_b32 v%d, 31, v%d" % (vt3, vL))
    for j in range(4):
        p.e("v_add_u32 v%d, %d, v%d" % (vt1, 2 * (j & 1), vt2))
        p.e("v_lshlrev_b32 v%d, 2, v%d" % (vt1, vt1))
        p.e("v_xor_b32 v%d, v%d, v%d" % (vt1, vt1, vt3))
        p.e("v_lshlrev_b32 v%d, 4, v%d" % (vt1, vt1))
        p.e("v_lshl_add_u32 v%d, v%d, 13, v%d" % (vt1, vt2, vt1))
        p.e("v_add_u32 v%d, %d, v%d" % (vW + j, j * 15360, vt1))
    p.e("v_lshrrev_b32 v%d, 3, v%d" % (vt1, vL))
    p.e("v_and_b32 v%d, 2, v%d" % (vt1, vt1))
    p.e("v_xor_b32 v%d, v%d, v%d" % (vt1, vt1, vC4))
    p.e("v_lshlrev_b32 v%d, 4, v%d" % (vt1, vt1))
    p.e("v_lshrrev_b32 v%d, 2, v%d" % (vt2, vL))
    p.e("v_lshl_add_u32 v%d, v%d, 10, v%d" % (vX, vt2, vt1))
    p.e("s_lshl_b32 s%d, s%d, 16" % (sWB, sWAVE))
    p.e("s_lshl_b32 s%d, s%d, 18" % (sWK, sHP))
    p.e("s_lshl_b32 s%d, s%d, 6" % (sXK, sHP))
    p.e("s_add_u32 s%d, s%d, s%d" % (sWOFF, sWK, sWB))
    p.e("s_add_u32 s%d, s%d, s%d" % (sXOFF, sXK, sWB))
    p.e("s_add_u32 s%d, s%d, 15360" % (sX1, sXOFF)); p.e("s_add_u32 s%d, s%d, 30720" % (sX2, sXOFF)); p.e("s_add_u32 s%d, s%d, 46080" % (sX3, sXOFF))
    p.e("s_waitcnt lgkmcnt(0)")
    p.e("s_lshl_b32 s%d, s%d, 18" % (sT + 3, sB))
    p.e("s_add_u32 s32, s32, s%d" % (sT + 3)); p.e("s_addc_u32 s33, s33, 0")
    srd(p, sX, 32, 33, 0x40000)
    p.e("s_lshl_b32 s%d, s%d, 9" % (sT + 3, sHP))
    p.e("s_add_u32 s38, s38, s%d" % (sT + 3)); p.e("s_addc_u32 s39, s39, 0")
    srd(p, sW, 38, 39, 0x400000)
    p.e("s_sub_u32 s%d, s%d, s%d" % (sW + 2, sW + 2, sT + 3))
    p.ext(stamp_lines(0))
    p.e("s_and_b32 s%d, s%d, 7" % (sT + 3, sHP))
    p.e("s_lshl_b32 s%d, s%d, 7" % (sT + 3, sT + 3))
    p.e("s_add_u32 s40, s40, s%d" % (sT + 3)); p.e("s_addc_u32 s41, s41, 0")
    srd(p, sWO, 40, 41, 0x400000)
    p.e("s_sub_u32 s%d, s%d, s%d" % (sWO + 2, sWO + 2, sT + 3))
    def warm():
        p.e("s_lshl_b32 s%d, s2, 2" % sT); p.e("s_add_u32 s%d, s%d, s%d" % (sT, sT, sWAVE)); p.e("s_lshl_b32 s%d, s%d, 12" % (sT, sT))
        p.e("s_lshl_b32 s%d, s%d, 10" % (sT + 1, sWAVE))
        p.e("s_add_u32 m0, s%d, 0x20000" % (sT + 1))
        p.e("s_nop 0")
        for j in range(4):
            p.e("buffer_load_dwordx4 v1, s[%d:%d], s%d offen lds" % (sWO, sWO + 3, sT))
            p.e("s_add_u32 s%d, s%d, 0x400" % (sT, sT))
    if opt("cpf", "0") == "1":
        p.e("s_getpc_b64 s[%d:%d]" % (sT + 4, sT + 5))
        p.lab("L_pc")
        p.e("s_and_b32 s%d, s%d, 0xffffff00" % (sT + 4, sT + 4))
        p.e("s_mov_b32 s96, s%d" % (sT + 4)); p.e("s_and_b32 s97, s%d, 0xffff" % (sT + 5)); p.e("s_mov_b32 s98, L_code_end-L_pc"); p.e("s_mov_b32 s99, 0x20000")
        p.e("s_lshr_b32 s%d, s2, 3" % sT); p.e("s_lshl_b32 s%d, s%d, 2" % (sT, sT)); p.e("s_add_u32 s%d, s%d, s%d" % (sT, sT, sWAVE))
        p.e("s_and_b32 s%d, s%d, 63" % (sT, sT)); p.e("s_lshl_b32 s%d, s%d, 10" % (sT, sT))
        p.e("s_lshl_b32 s%d, s%d, 10" % (sT + 1, sWAVE))
        p.e("s_add_u32 m0, s%d, 0x21000" % (sT + 1))
        p.e("s_nop 0")
        p.e("buffer_load_dwordx4 v1, s[96:99], s%d offen lds" % sT)
    WPOS = opt("wpos", "0")
    if WPOS == "0": warm()
    for s in range(3):
        for which in ("W", "X"):
            setup, d, post = wx_dma_group(which, s)
            for x in setup: p.e(x)
            p.e("s_nop 0")
            for x in d: p.e(x)
            for x in post: p.e(x)
    if WPOS == "1": warm()
    for t in range(4):
        p.e("v_add_u32 v%d, %d, v%d" % (vt1, 4 * t, vG))
        p.e("v_xor_b32 v%d, v%d, v%d" % (vt1, vt1, vL16))
        p.e("v_lshlrev_b32 v%d, 4, v%d" % (vt1, vt1))
        p.e("v_lshl_add_u32 v%d, v%d, 8, v%d" % (aK + t, vL16, vt1))
        p.e("v_lshl_add_u32 v%d, v%d, 8, v%d" % (vK + t, vG, vt1))
    p.e("v_and_b32 v%d, 1, v%d" % (vt2, vG))
    p.e("v_lshl_add_u32 v%d, v%d, 2, v%d" % (vt2, vt2, vR))
    p.e("v_lshl_add_u32 v%d, v%d, 2, v%d" % (vt3, vG, vR))
    p.e("v_lshlrev_b32 v%d, 8, v%d" % (vt3, vt3))
    p.e("v_lshl_add_u32 v%d, v%d, 3, v%d" % (vt3, vC4, vt3))
    p.e("v_add_u32 v%d, 0x10000, v%d" % (vt3, vt3))
    for db in range(8):
        p.e("v_xor_b32 v%d, %d, v%d" % (vt1, db, vt2))
        p.e("v_lshl_add_u32 v%d, v%d, 5, v%d" % (aV + db, vt1, vt3))
    for j in range(2):
        p.e("v_add_u32 v%d, %d, v%d" % (vt1, 4 * j, vG))
        p.e("v_lshlrev_b32 v%d, 1, v%d" % (vt1, vt1))
        p.e("v_xor_b32 v%d, v%d, v%d" % (vt1, vt1, vL16))
        p.e("v_lshlrev_b32 v%d, 4, v%d" % (vt1, vt1))
        p.e("v_lshl_add_u32 v%d, v%d, 8, v%d" % (vV + j, vG, vt1))
    p.e("v_lshl_add_u32 v%d, v%d, 3, v%d" % (vt3, vG, vR))
    p.e("v_lshlrev_b32 v%d, 9, v%d" % (vt3, vt3))
    p.e("v_lshl_add_u32 v%d, v%d, 4, v%d" % (vt3, vC4, vt3))
    for t in range(4):
        p.e("v_xor_b32 v%d, %d, v%d" % (vt1, t, vR))
        p.e("v_lshl_add_u32 v%d, v%d, 6, v%d" % (aW + t, vt1, vt3))
    p.e("v_lshrrev_b32 v%d, 1, v%d" % (vt1, vL16))
    p.e("v_and_b32 v%d, 2, v%d" % (vt1, vt1))
    p.e("v_xor_b32 v%d, v%d, v%d" % (vt1, vt1, vG))
    p.e("v_lshlrev_b32 v%d, 4, v%d" % (vt1, vt1))
    p.e("v_lshl_add_u32 v%d, v%d, 6, v%d" % (vt1, vL16, vt1))
    p.e("v_add_u32 v%d, 0x10000, v%d" % (vt1, vt1))
    p.e("v_add_u32 v%d, s%d, v%d" % (aX, sW4K, vt1))
    p.e("v_lshlrev_b32 v%d, 2, v%d" % (vCA, vL))
    p.e("v_add_u32 v%d, 0x%x, v%d" % (vCA, LDS_CNT, vCA))
    p.e("v_mov_b32 v%d, 0" % vt1)
    p.e("v_add_u32 v%d, %d, v%d" % (vt2, (LDS_BAD - LDS_CNT) & 0xffffffff, vCA))
    p.e("v_mov_b32 v%d, 1" % vt3)
    p.e("v_accvgpr_write_b32 a%d, v%d" % (AONE, vt3))
    p.e("s_cmp_lg_u32 s%d, 0" % sWAVE)
    p.e("s_cbranch_scc1 L_nozero")
    p.e("ds_write_b32 v%d, v%d" % (vCA, vt1))
    p.e("ds_write_b32 v%d, v%d" % (vt2, vt1))
    p.lab("L_nozero")
    p.e("s_mov_b32 s%d, 4" % sEXP)
    p.e("s_lshl_b32 s%d, s%d, 4" % (sT + 2, sB))
    p.e("s_add_u32 s%d, s%d, s%d" % (sT + 2, sT + 2, sHP))
    p.e("s_lshl_b32 s%d, s%d, 19" % (sT + 3, sT + 2))
    p.e("s_add_u32 s34, s34, s%d" % (sT + 3)); p.e("s_addc_u32 s35, s35, 0")
    p.e("s_add_u32 s36, s36, s%d" % (sT + 3)); p.e("s_addc_u32 s37, s37, 0")
    srd(p, sK, 34, 35, 0x80000)
    srd(p, sV, 36, 37, 0x80000)
    p.e("s_lshl_b32 s%d, s%d, 21" % (sT + 3, sB))
    p.e("s_add_u32 s%d, s46, s%d" % (sT + 4, sT + 3)); p.e("s_addc_u32 s%d, s47, 0" % (sT + 5))
    srd(p, sO, sT + 4, sT + 5, 0x200000)
    srd(p, sD, 44, 45, 256)
    srd(p, sOUT, 42, 43, 0x400000)
    p.e("s_and_b32 s%d, s%d, 7" % (sT + 3, sHP))
    p.e("s_lshl_b32 s%d, s%d, 7" % (sT + 3, sT + 3))
    p.e("s_lshr_b32 s%d, s%d, 3" % (sT + 4, sHP))
    p.e("s_lshl_b32 s%d, s%d, 13" % (sQT13, sT + 4))
    p.e("s_lshl_b32 s%d, s%d, 18" % (sOUTO, sB))
    p.e("s_lshl_b32 s%d, s%d, 17" % (sT + 5, sT + 4)); p.e("s_add_u32 s%d, s%d, s%d" % (sOUTO, sOUTO, sT + 5))
    p.e("s_lshl_b32 s%d, s%d, 15" % (sT + 5, sWAVE)); p.e("s_add_u32 s%d, s%d, s%d" % (sOUTO, sOUTO, sT + 5))
    p.e("s_add_u32 s%d, s%d, s%d" % (sOUTO, sOUTO, sT + 3))
    p.e("s_lshl_b32 s%d, s%d, 2" % (sCOFF, sB)); p.e("s_add_u32 s%d, s%d, s%d" % (sCOFF, sCOFF, sWAVE)); p.e("s_lshl_b32 s%d, s%d, 2" % (sCOFF, sCOFF))
    p.e("s_lshr_b32 s%d, s%d, 2" % (sT, sHP)); p.e("s_lshl_b32 s%d, s%d, 2" % (sT + 1, sB)); p.e("s_add_u32 s%d, s%d, s%d" % (sPOFF, sT, sT + 1)); p.e("s_lshl_b32 s%d, s%d, 2" % (sPOFF, sPOFF))
    p.e("s_lshl_b32 s%d, s%d, 15" % (sM0B, sWAVE))
    p.e("s_cmp_eq_u32 s%d, 3" % sWAVE); p.e("s_cselect_b32 s%d, 0x20000, s%d" % (sM0B, sM0B))
    p.e("s_mov_b32 s%d, s%d" % (sKOFF, sW4K))
    p.e("s_mov_b32 s%d, s%d" % (sVOFF, sW4K))
    p.e("s_lshl_b32 s%d, s%d, 17" % (sOOFF, sHP))
    p.e("s_add_u32 s%d, s%d, s%d" % (sOOFF, sOOFF, sW4K))
    for r in range(128): p.e("v_accvgpr_write_b32 a%d, 0" % r)
    for r in range(128, 256): p.e("v_mov_b32 v%d, 0" % r)
    for r in range(AR + 48, AR + 64): p.e("v_mov_b32 v%d, 0" % r)
    for r in range(XB + 16, XB + 32): p.e("v_mov_b32 v%d, 0" % r)
    p.e("s_waitcnt vmcnt(%d) lgkmcnt(0)" % (20 if WPOS == "1" else 16))
    p.e("s_barrier")
    p.ext(stamp_lines(1))
    def qp(s, groups, vm):
        return auto_lgkm(qproj_period(s % 4, s % 2, groups, vm).lines())
    p.e("s_mov_b32 s%d, 3" % sCNT)
    body = []
    for s in range(4):
        sl = (s + 3) % 4
        body += qp(s, [wx_dma_group("W", sl), wx_dma_group("X", sl)], 16)
    errs += check(strip_ctl(body + body), "qproj")
    p.lab("L_qloop"); p.ext(body)
    p.e("s_sub_u32 s%d, s%d, 1" % (sCNT, sCNT))
    p.e("s_cmp_lg_u32 s%d, 0" % sCNT)
    p.e("s_cbranch_scc1 L_qloop")
    tail = []
    tail += qp(12, [wx_dma_group("W", 3), wx_dma_group("X", 3)], 16)
    tail += qp(13, [kv_dma_group("K", 0)], 12)
    tail += qp(14, [kv_dma_group("K", 1), kv_dma_group("V", 0)], 12)
    tail += qp(15, [kv_dma_group("K", 2), kv_dma_group("V", 1)], 16)
    for blk in range(12, 16):
        for qb in range(4):
            tail.append("  " + mfma(acc_reg(blk, qb), vr(AR + blk * 4, 4), vr(XB + 16 + qb * 4, 4), acc_reg(blk, qb)))
    for which, sl in (("K", 3), ("V", 2)):
        setup, d, post = kv_dma_group(which, sl)
        tail += ["  " + x for x in setup] + ["  s_nop 0"] + ["  " + x for x in d] + ["  " + x for x in post]
    tail += stamp_lines(2)
    for kb in range(2):
        for t in range(4):
            tail.append("  ds_read_b128 %s, v%d offset:%d" % (ar(KA_ + (kb * 4 + t) * 4, 4), aK + t, kb * 4096))
    SC = 20
    conv = ["v_mov_b32 v%d, 0x%x" % (SC, f2u(SCALE)), "v_mov_b32 v%d, 0x%x" % (SC + 1, f2u(SCALE)), "v_mov_b32 v%d, 0x3f803f80" % (SC + 2)]
    for r in range(4): conv.append("v_accvgpr_write_b32 a%d, v%d" % (ONES + r, SC + 2))
    for t in range(4):
        for qb in range(4):
            X = ((2 * t) * 4 + qb) * 4; Y = X + 16; T = 64 + qb * 8
            for r in range(4): conv.append("v_accvgpr_read_b32 v%d, a%d" % (T + r, X + r))
            for r in range(4): conv.append("v_accvgpr_read_b32 v%d, a%d" % (T + 4 + r, Y + r))
        for qb in range(4):
            T = 64 + qb * 8
            for r in range(0, 8, 2): conv.append("v_pk_mul_f32 v[%d:%d], v[%d:%d], v[%d:%d]" % (T + r, T + r + 1, T + r, T + r + 1, SC, SC + 1))
        for qb in range(4):
            T = 64 + qb * 8
            for r in range(4): conv.append("v_cvt_pk_bf16_f32 v%d, v%d, v%d" % (96 + qb * 4 + r, T + 2 * r, T + 2 * r + 1))
        for qb in range(4):
            for r in range(4): conv.append("v_accvgpr_write_b32 a%d, v%d" % (QA + (t * 4 + qb) * 4 + r, 96 + qb * 4 + r))
    for t in range(4):
        for qb in range(4):
            X = 128 + ((2 * t) * 4 + qb) * 4; Y = X + 16
            for base in (X, X + 2, Y, Y + 2): conv.append("v_pk_mul_f32 v[%d:%d], v[%d:%d], v[%d:%d]" % (base, base + 1, base, base + 1, SC, SC + 1))
        for qb in range(4):
            X = 128 + ((2 * t) * 4 + qb) * 4; Y = X + 16
            conv.append("v_cvt_pk_bf16_f32 v%d, v%d, v%d" % (X, X, X + 1)); conv.append("v_cvt_pk_bf16_f32 v%d, v%d, v%d" % (X + 1, X + 2, X + 3))
            conv.append("v_cvt_pk_bf16_f32 v%d, v%d, v%d" % (X + 2, Y, Y + 1)); conv.append("v_cvt_pk_bf16_f32 v%d, v%d, v%d" % (X + 3, Y + 2, Y + 3))
        for qb in range(4):
            X = 128 + ((2 * t) * 4 + qb) * 4
            for r in range(4): conv.append("v_accvgpr_write_b32 a%d, v%d" % (Q2A + (t * 4 + qb) * 4 + r, X + r))
    cl, e2 = autofix(strip_ctl(tail[-40:]), ind(conv) + ["  s_waitcnt lgkmcnt(0)"], "conv"); errs += e2
    tail += cl
    p.ext(tail)
    p.e("s_cmp_lg_u32 s%d, 0" % sMODE)
    p.e("s_cbranch_scc1 L_slow")
    p.ext(stamp_lines(3))
    G = att_period(1, 0, 1, 0, 0, [], do_qk=True, do_pv=False, do_vread=False, first=True, sync=16)
    pro, e2 = autofix(strip_ctl(tail[-40:]), G.lines(), "attpro"); errs += [x for x in e2 if "LDS result" not in x]
    p.ext(pro); p.e("s_waitcnt lgkmcnt(0)")
    p.ext(stamp_lines(4))
    if DIAG: p.e("s_mov_b32 s100, 0"); p.e("s_mov_b32 s101, 0")
    p.e("s_mov_b32 s%d, 0" % sCNT)
    endp = ["  s_waitcnt lgkmcnt(0)"]
    parts = []
    for tp in range(4):
        G0 = att_period(0, (tp + 1) % 4, 0, tp % 4, 0, [kv_dma_group("K", tp % 4)])
        G1 = att_period(1, (tp + 1) % 4, 1, tp % 4, 1, [kv_dma_group("V", (tp + 3) % 4)], sync=16, alt=((4, 32) if tp in (0, 1) else None))
        parts.append((G0.lines() + endp, G1.lines() + endp))
    flat = []
    for l0, l1 in parts: flat += l0 + l1
    errs += check(strip_ctl(flat + flat), "att")
    cz0 = att_period(0, 1, 0, 0, 0, [kv_dma_group("K", 0)], czero=True).lines() + endp
    cz1 = att_period(0, 1, 0, 0, 0, [kv_dma_group("K", 0)], czero=True)
    gcur = 9
    for k, (pre, op, post) in enumerate(epi_stores(True)):
        qb, t = k // 4, k % 4
        while cz1.cost(gcur) > 4: gcur += 1
        assert gcur < 32 + 9 * qb + 2 * t - 1, (qb, t, gcur)
        cz1.pre[gcur - 1].extend(pre); cz1.mem[gcur].append(op); cz1.post[gcur].extend(post)
        gcur += 2
    cz1l = cz1.lines() + endp
    sw = ["  v_accvgpr_mov_b32 a%d, a%d" % (QA + r, Q2A + r) for r in range(64)]
    swp = att_period(1, 0, 1, 3, 1, [kv_dma_group("V", 2)], first=True, sync=16)
    swl, e2 = autofix(strip_ctl(parts[3][0]) + sw, swp.lines() + endp, "swp"); errs += [x for x in e2 if "LDS result" not in x]
    ep1 = ind(epi_valu())
    ep1, e2 = autofix(strip_ctl(swl), ep1, "ep1"); errs += e2
    errs += check(strip_ctl(swl + ep1 + cz1l + parts[0][1]), "attsw")
    p.lab("L_aloop")
    for tp in range(4):
        l0, l1 = parts[tp]
        if tp == 0:
            p.e("s_cmp_eq_u32 s%d, 0" % sCNT); p.e("s_cbranch_scc1 L_cz0")
            p.e("s_cmp_eq_u32 s%d, 4" % sCNT); p.e("s_cbranch_scc1 L_cz1")
        p.ext(l0)
        if tp == 0: p.lab("L_cz_ret")
        if tp == 3:
            p.e("s_cmp_eq_u32 s%d, 3" % sCNT); p.e("s_cbranch_scc1 L_switch")
        p.ext(l1)
        if tp == 2:
            p.e("s_cmp_eq_u32 s%d, 4" % sCNT); p.e("s_cbranch_scc1 L_sig1")
            p.lab("L_sig1_ret")
    p.lab("L_switch_ret")
    p.e("s_add_u32 s%d, s%d, 1" % (sCNT, sCNT))
    p.e("s_cmp_lt_u32 s%d, 7" % sCNT)
    p.e("s_cbranch_scc1 L_aloop")
    last = []
    last += att_period(0, 1, 0, 0, 0, []).lines() + endp
    last += att_period(1, 1, 1, 0, 1, [kv_dma_group("V", 3)], sync=12).lines() + endp
    g = att_period(0, 2, 0, 1, 0, [])
    g.mem[40].append("buffer_load_dword v%d, off, s[%d:%d], s%d sc1" % (vT0 + 7, sD, sD + 3, sCOFF))
    last += g.lines() + endp
    last += att_period(1, 2, 1, 1, 1, [], sync=5).lines() + endp
    last += att_period(0, 3, 0, 2, 0, []).lines() + endp
    last += att_period(1, 3, 1, 2, 1, [], sync=0).lines() + endp
    errs += check(strip_ctl(flat + last), "last")
    p.ext(last)
    p.ext(stamp_lines(7))
    if DIAG:
        p.e("v_writelane_b32 v%d, s100, 30" % STP); p.e("v_writelane_b32 v%d, s101, 31" % STP)
    p.e("s_cmp_eq_u32 s%d, 0" % sSG1)
    p.e("s_cbranch_scc1 L_goslow")
    p.ext(poll_check("L_f1", 0, vT0 + 7))
    tp31a = att_period(0, 0, 0, 3, 0, [], do_kread=False)
    l31a = tp31a.lines() + endp
    oa = ind(oproj_addr(vT0 - 2))
    ex = op_issue(0, 1) + op_issue(1, 1) + op_issue(2, 1) + op_issue(3, 5) + op_issue(4, 1)
    tp31b = att_period(1, 0, 1, 3, 1, [], do_qk=False, do_kread=False, extra_mem=ex, extra_lo=1)
    l31b, e2 = autofix(strip_ctl(l31a + oa), tp31b.lines(), "tp31b"); errs += e2
    errs += check(strip_ctl(last[-200:] + l31a + oa + l31b), "tp31")
    p.ext(l31a); p.ext(oa); p.ext(l31b)
    p.ext(stamp_lines(8))
    ep2, e2 = autofix(strip_ctl(l31b), ind(epi_valu()), "ep2"); errs += e2
    p.ext(ep2)
    p.ext(ind(epi_bad("L_nobad2")))
    for pre, op, post in epi_stores():
        p.e(op)
        for x in post: p.e(x)
    p.e("s_waitcnt lgkmcnt(0)")
    p.e("s_barrier")
    p.e("v_add_u32 v110, %d, v%d" % ((LDS_BAD - LDS_CNT) & 0xffffffff, vCA))
    p.e("ds_read_b32 v111, v110")
    p.e("s_waitcnt lgkmcnt(0)")
    p.e("v_cmp_ne_u32 vcc, 0, v111")
    p.e("s_cbranch_vccnz L_goslow")
    p.lab("L_oproj")
    p.e("s_waitcnt vmcnt(40)")
    for x in op_areads(0, 0): p.e(x)
    p.e("s_waitcnt lgkmcnt(0)")
    p.ext(stamp_lines(9))
    p.e("s_mov_b32 s%d, 0" % sCNT)
    def steps_for(first):
        st = []
        for c in range(8):
            delta = ("sel", 1) if c == 2 else (5 if c == 6 else 1)
            vm = 36
            if first and c < 3: vm = [52, 52, 52][c]
            st.append(op_step(c, vm, True, delta, poll=(c == 4), czero=(first and c == 0)))
        return st
    it0 = steps_for(True); itn = steps_for(False)
    errs += check(sum(it0, []) + sum(itn, []), "oproj0")
    errs += check(sum(itn, []) + sum(itn, []), "oproj")
    for c in range(8):
        if c == 3:
            p.e("s_waitcnt vmcnt(36)"); p.e("s_barrier")
            p.e("s_cmp_lg_u32 s%d, 0" % sMODE); p.e("s_cbranch_scc1 L_sig2_skip")
            p.ext(signal("L_sig2_skip", 0x10000, vSIG, vSIG2))
        p.ext(it0[c])
    p.e("s_mov_b32 s%d, 1" % sCNT)
    p.lab("L_oloop")
    for c in range(8):
        if c == 3:
            p.e("s_cmp_eq_u32 s%d, 1" % sCNT); p.e("s_cbranch_scc1 L_f2chk"); p.lab("L_f2chk_ret")
        p.ext(itn[c])
    p.e("s_add_u32 s%d, s%d, 1" % (sCNT, sCNT))
    p.e("s_cmp_lt_u32 s%d, 3" % sCNT)
    p.e("s_cbranch_scc1 L_oloop")
    tl = []
    vms = [36, 36, 36, 36, 24, 12, 0, 0]
    for c in range(8): tl += op_step(c, vms[c], c <= 2, 1, last=(c == 7))
    errs += check(sum(itn, []) + tl, "oprojtail")
    p.ext(tl)
    p.ext(stamp_lines(10))
    p.e("s_barrier")
    p.e("s_lshl_b32 s%d, s%d, 15" % (sT + 1, sWAVE))
    p.e("v_add_u32 v33, s%d, v1" % (sT + 1))
    p.e("s_lshl_b32 s%d, s%d, 11" % (sT, sWAVE))
    p.e("v_add_u32 v34, s%d, v1" % sT)
    p.e("v_add_u32 v35, 0x10000, v34")
    p.e("v_add_u32 v36, 0x4000, v%d" % vOUT)
    red = ["s_nop 4"]
    for blk in range(32): red.append("ds_write_b128 v33, %s offset:%d" % (vr(ACC + blk * 4, 4), blk * 1024))
    red.append("s_waitcnt lgkmcnt(0)"); red.append("s_barrier")
    for src in range(4):
        for nb in range(4):
            for q2 in range(2):
                red.append("ds_read_b128 %s, v%d offset:%d" % (vr(128 + (src * 8 + nb * 2 + q2) * 4, 4), 34 if src < 2 else 35, (src % 2) * 32768 + (nb * 8 + q2) * 1024))
        if src == 1: red.append("s_waitcnt lgkmcnt(8)")
    red.append("s_waitcnt lgkmcnt(0)")
    for k in range(8):
        nb, q2 = k // 2, k % 2
        for r in range(4):
            a = 128 + k * 4 + r
            red.append("v_add_f32 v%d, v%d, v%d" % (a, a, a + 32)); red.append("v_add_f32 v%d, v%d, v%d" % (a + 64, a + 64, a + 96))
        for r in range(4):
            a = 128 + k * 4 + r
            red.append("v_add_f32 v%d, v%d, v%d" % (a, a, a + 64))
        red.append("v_cvt_pk_bf16_f32 v%d, v%d, v%d" % (64 + k * 2, 128 + k * 4, 128 + k * 4 + 1))
        red.append("v_cvt_pk_bf16_f32 v%d, v%d, v%d" % (65 + k * 2, 128 + k * 4 + 2, 128 + k * 4 + 3))
        red.append("buffer_store_dwordx2 v[%d:%d], v%d, s[%d:%d], s%d offen offset:%d" % (64 + k * 2, 65 + k * 2, vOUT if q2 == 0 else 36, sOUT, sOUT + 3, sOUTO, nb * 32))
    rl = ind(red)
    errs += check(tl[-40:] + rl, "red")
    p.ext(rl)
    if STAMPS:
        p.e("s_waitcnt vmcnt(0)"); p.ext(stamp_lines(11)); stamp_store(p)
    p.lab("L_end")
    p.e("s_endpgm")
    p.lab("L_cz0"); p.ext(cz0); p.e("s_branch L_cz_ret")
    p.lab("L_cz1"); p.ext(stamp_lines(12)); p.ext(cz1l); p.ext(stamp_lines(13)); p.e("s_branch L_cz_ret")
    p.lab("L_switch"); p.ext(sw); p.ext(swl)
    p.ext(stamp_lines(5)); p.ext(ep1); p.ext(ind(epi_bad("L_nobad1"))); p.ext(stamp_lines(6)); p.e("s_branch L_switch_ret")
    p.lab("L_sig1")
    p.e("v_add_u32 v%d, %d, v%d" % (vT0 + 4, (LDS_BAD - LDS_CNT) & 0xffffffff, vCA))
    p.e("ds_read_b32 v%d, v%d" % (vT0 + 5, vT0 + 4)); p.e("s_waitcnt lgkmcnt(0)")
    p.e("v_cmp_ne_u32 vcc, 0, v%d" % (vT0 + 5)); p.e("s_cbranch_vccnz L_sig1_ret")
    p.e("s_mov_b32 s%d, 1" % sSG1)
    p.ext(signal("L_sig1_skip", 1, vT0 + 4, vT0 + 5)); p.e("s_branch L_sig1_ret")
    p.lab("L_f2chk"); p.ext(poll_check("L_f2", 16, vPOLL)); p.e("s_branch L_f2chk_ret")
    p.lab("L_goslow")
    p.e("s_waitcnt vmcnt(0) lgkmcnt(0)"); p.e("s_barrier")
    p.e("s_mov_b32 s%d, 1" % sMODE); p.e("s_branch L_restart")
    errs += slow_attention(p)
    p.ext(poll_check("L_f1s", 0, vT0 + 7)[4:])
    p.ext(ind(oproj_addr(vT0 - 2)))
    for pre, op, post in op_issue(0, 1) + op_issue(1, 1) + op_issue(2, 1) + op_issue(3, 5) + op_issue(4, 1):
        for x in pre: p.e(x); p.e("s_nop 0")
        p.e(op)
        for x in post: p.e(x)
    p.e("s_waitcnt vmcnt(0)")
    p.e("s_mov_b32 s%d, 2" % sMODE)
    p.e("s_branch L_oproj")
    p.ext(SY.ool)
    p.lab("L_code_end")
    for e in errs: print("HAZARD:", e, file=sys.stderr)
    return p.L

HDR = open("standalone__mha_block_cached__near_ridge.s.ref").read().split("; Override")[0]
def main():
    s = HDR + "; @launch grid=(256,1,1) block=(256,1,1) lds=163840\n"
    s += '.amdgcn_target "amdgcn-amd-amdhsa--gfx950"\n.text\n'
    s += ".globl %s\n.p2align 8\n.type %s,@function\n%s:\n" % (KNAME, KNAME, KNAME)
    s += "\n".join(kernel()) + "\n"
    s += '.section .rodata,"a"\n.p2align 6\n'
    s += """.amdhsa_kernel %s
  .amdhsa_next_free_vgpr 512
  .amdhsa_next_free_sgpr 102
  .amdhsa_accum_offset 256
  .amdhsa_group_segment_fixed_size 0
  .amdhsa_kernarg_size 64
  .amdhsa_user_sgpr_count 2
  .amdhsa_user_sgpr_kernarg_segment_ptr 1
  .amdhsa_system_sgpr_workgroup_id_x 1
.end_amdhsa_kernel
""" % KNAME
    open(OUT, "w").write(s)
main()
```
